```python
import torch

def _softmax(x, axis=-1):
    return torch.softmax(x, dim=axis)
def _gelu(x):
    return torch.nn.functional.gelu(x, approximate="tanh")
def _silu(x):
    return torch.nn.functional.silu(x)
def _sigmoid(x):
    return torch.sigmoid(x)
def _layernorm(x, axis=-1, eps=1e-5):
    m = x.mean(dim=axis, keepdim=True)
    v = x.var(dim=axis, keepdim=True, unbiased=False)
    return (x - m) / torch.sqrt(v + eps)
def _scatter_add(tgt, idx, src, axis=0):
    return tgt.clone().index_add_(axis, idx, src)
def _segment_sum(src, seg, n):
    out = torch.zeros((n,) + src.shape[1:], dtype=src.dtype)
    return out.index_add_(0, seg, src)
def _pad(x, pw):
    flat = tuple(v for pair in reversed(pw) for v in pair)
    return torch.nn.functional.pad(x, flat)

kernel_name = 'standalone__batchnorm__sampling'

def setup_inputs():

    _w = (lambda a: (lambda t: t.to(torch.bfloat16) if t.is_floating_point() else t)(torch.as_tensor(a)))
    B, S, C = 1024, 1, 1024
    K = 3
    return {
        "x": _w((lambda *s: torch.randn(*s, dtype=torch.bfloat16) * 0.05)(B, S, C)),
        "w": _w((lambda *s: torch.randn(*s, dtype=torch.bfloat16) * 0.05)(K, C, C) * (1.0 / (K * C) ** 0.5)),
        "mean": _w((lambda *s: torch.randn(*s, dtype=torch.bfloat16) * 0.05)(C) * 0.1),
        "var": _w(torch.abs((lambda *s: torch.randn(*s, dtype=torch.bfloat16) * 0.05)(C)) + 0.5),
        "g": _w((lambda *s: torch.randn(*s, dtype=torch.bfloat16) * 0.05)(C) + 1.0),
        "b": _w((lambda *s: torch.randn(*s, dtype=torch.bfloat16) * 0.05)(C) * 0.1),
    }

def reference(x, w, mean, var, g, b):
    K = 3
    P = K // 2
    S = x.shape[1]
    xp = _pad(x, ((0, 0), (P, P), (0, 0)))
    y = sum(torch.einsum('bsc,cd->bsd', xp[:, k:k + S, :], w[k]) for k in range(K))
    inv_std = 1.0 / torch.sqrt(var + 1e-5)
    y = (y - mean) * (g * inv_std) + b
    return _silu(y)
```

```python
import sys, argparse

HEADER = """; Kernarg layout for this problem (72 bytes, ptrs only, base s[0:1]):
"""
NAME = "standalone__batchnorm__sampling_kernel"

class G:
    def __init__(self, o):
        self.o = o; self.L = []; self.sn = 0
    def e(self, s): self.L.append(s)
    def stamp(self):
        o = self.o
        i = self.sn; self.sn += 1
        if o.stamps:
            self.e(f"  s_memtime s[{56+2*i}:{57+2*i}]")
    def dump(self, n):
        e = self.e
        e("  s_waitcnt lgkmcnt(0) vmcnt(0)")
        e("  s_mul_i32 s44, s2, 5")
        e("  s_add_u32 s44, s44, s38")
        e("  s_lshl_b32 s44, s44, 7")
        e("  v_mov_b32 v1, s44")
        for i in range(32):
            e(f"  v_mov_b32 v{20+i}, " + (f"s{56+2*i}" if i < n else "0"))
        e("  s_mov_b64 exec, 1")
        for i in range(8):
            e(f"  global_store_dwordx4 v1, v[{20+4*i}:{23+4*i}], s[54:55] offset:{16*i}")

def move_nibbles(e, src_nib, dst_nib, cnt):
    e(f"  s_lshl_b64 s[46:47], -1, {dst_nib}")
    e(f"  s_lshl_b64 s[48:49], -1, {src_nib}")
    e("  s_andn2_b64 s[50:51], s[46:47], s[48:49]")
    e("  s_and_b64 s[50:51], s[50:51], s[30:31]")
    e(f"  s_lshl_b64 s[50:51], s[50:51], {4*cnt}")
    e(f"  s_lshl_b64 s[52:53], s[48:49], {4*cnt}")
    e("  s_andn2_b64 s[48:49], s[48:49], s[52:53]")
    e("  s_and_b64 s[48:49], s[48:49], s[30:31]")
    e(f"  s_lshr_b64 s[48:49], s[48:49], {src_nib}")
    e(f"  s_lshl_b64 s[48:49], s[48:49], {dst_nib}")
    e("  s_andn2_b64 s[46:47], s[46:47], s[52:53]")
    e("  s_andn2_b64 s[30:31], s[30:31], s[46:47]")
    e("  s_or_b64 s[30:31], s[30:31], s[50:51]")
    e("  s_or_b64 s[30:31], s[30:31], s[48:49]")

def gen(o):
    g = G(o); e = g.e
    PAR = 131072
    lds = PAR + 1024
    e(HEADER.rstrip())
    e(f"; @launch grid=(256,1,1) block=(320,1,1) lds={lds}")
    e('.amdgcn_target "amdgcn-amd-amdhsa--gfx950"')
    e(".text"); e(f".globl {NAME}"); e(".p2align 8"); e(f".type {NAME},@function"); e(f"{NAME}:")
    g.stamp()
    e("  s_load_dwordx2 s[20:21], s[0:1], 0")
    e("  s_load_dwordx2 s[24:25], s[0:1], 8")
    e("  s_cmp_ge_u32 s2, 256")
    e("  s_cbranch_scc1 L_end")
    if o.stamps: e("  s_load_dwordx2 s[54:55], s[0:1], 64")
    e("  v_lshrrev_b32 v2, 6, v0")
    e("  s_lshr_b32 s29, s2, 3")
    e("  v_readfirstlane_b32 s38, v2")
    e("  s_lshr_b32 s28, s29, 3")
    e("  s_and_b32 s29, s29, 7")
    e("  s_bfe_u32 s32, s2, 0x20001")
    e("  s_and_b32 s33, s2, 1")
    e("  s_lshl2_add_u32 s34, s32, s28")
    e("  s_lshl3_add_u32 s35, s33, s29")
    e("  s_cmp_lg_u32 s38, 0")
    e("  s_cbranch_scc1 L_cons")
    e("  v_lshrrev_b32 v3, 3, v0")
    e("  v_lshlrev_b32 v3, 11, v3")
    e("  v_and_b32 v5, 7, v0")
    e("  v_lshrrev_b32 v6, 4, v0")
    e("  v_xor_b32 v7, v5, v6")
    e("  v_lshl_add_u32 v10, v7, 4, v3")
    e("  v_xor_b32 v11, 64, v10")
    e("  v_add_u32 v11, 15360, v11")
    e("  v_add_u32 v12, 30720, v10")
    e("  v_add_u32 v13, 30720, v11")
    e("  v_lshlrev_b32 v6, 2, v6")
    e("  v_and_b32 v6, 4, v6")
    e("  v_xor_b32 v7, v5, v6")
    e("  v_lshl_add_u32 v14, v7, 4, v3")
    e("  v_add_u32 v15, 15360, v14")
    e("  v_add_u32 v16, 30720, v14")
    e("  v_add_u32 v17, 46080, v14")
    e("  s_mov_b32 s22, 0x200000")
    e("  s_mov_b32 s23, 0x20000")
    e("  s_mov_b32 s26, 0x400000")
    e("  s_mov_b32 s27, 0x20000")
    e("  s_lshl_b32 s36, s34, 17")
    e("  s_lshl_b32 s37, s35, 7")
    e("  s_bitset1_b32 s37, 21")
    e("  s_mov_b32 s30, 0x76543210")
    e("  s_mov_b32 s31, 0xfedcba98")
    p = o.sched.split("_"); k = p[0]; arg = [int(x) for x in p[1:]]
    e("  s_mov_b32 s39, 0")
    if k == "rot0":
        pass
    elif k == "rot1":
        e("  s_lshl1_add_u32 s39, s28, s29")
        e("  s_and_b32 s40, s32, 1")
        e("  s_add_u32 s39, s39, s40")
        e("  s_lshl_b32 s39, s39, 1")
    elif k == "jit":
        e("  s_add_u32 s40, s34, s35")
        e("  s_and_b32 s40, s40, 15")
        e("  s_lshl_b32 s40, s40, 2")
        e(f"  s_sub_i32 s41, s40, {4*arg[0]}")
        e("  s_max_i32 s41, s41, 0")
        move_nibbles(e, "s40", "s41", 1)
    elif k == "duty2":
        e("  s_add_u32 s40, s28, s29")
        e("  s_and_b32 s40, s40, 3")
        e("  s_lshl_b32 s42, s40, 3")
        e(f"  s_sub_i32 s41, s42, {4*arg[0]}")
        e("  s_max_i32 s41, s41, 0")
        move_nibbles(e, "s42", "s41", 2)
        e("  s_add_u32 s42, s42, 32")
        e(f"  s_sub_i32 s41, s42, {4*arg[0]}")
        move_nibbles(e, "s42", "s41", 2)
        e("  s_lshl1_add_u32 s39, s33, s32")
        e("  s_lshl_b32 s39, s39, 2")
    else:
        raise SystemExit("sched")
    e("  s_mov_b32 s40, 0")
    e("  s_waitcnt lgkmcnt(0)")
    g.stamp()
    e("L_load:")
    e("  s_add_u32 s41, s30, s39")
    e("  s_and_b32 s41, s41, 15")
    e("  s_and_b32 m0, s40, 0x1ffff")
    e("  s_lshl_b32 s42, s41, 7")
    e("  s_add_u32 s42, s42, s36")
    e("  buffer_load_dwordx4 v10, s[20:23], s42 offen lds")
    e("  s_lshl_b32 s43, s41, 17")
    e("  buffer_load_dwordx4 v11, s[20:23], s42 offen offset:1024 lds")
    e("  s_cmp_lt_u32 s40, 49152")
    e("  s_cbranch_scc1 L_nosig")
    e("  s_waitcnt vmcnt(34)")
    e("  s_barrier")
    if o.stamps:
        e("  s_waitcnt lgkmcnt(0)")
        e("  s_mov_b32 s45, m0")
        e("  s_lshr_b32 m0, s40, 14")
        e("  s_nop 0")
        e("  v_writelane_b32 v60, s94, m0")
        e("  s_mov_b32 m0, s45")
        e("  s_memtime s[94:95]")
    e("L_nosig:")
    e("  buffer_load_dwordx4 v12, s[20:23], s42 offen offset:2048 lds")
    e("  s_add_u32 s43, s43, s37")
    e("  buffer_load_dwordx4 v13, s[20:23], s42 offen offset:3072 lds")
    e("  s_add_u32 m0, m0, 4096")
    e("  s_add_u32 s42, s42, 65536")
    for q in range(4):
        e(f"  buffer_load_dwordx4 v{10+q}, s[20:23], s42 offen offset:{1024*q} lds")
    e("  s_add_u32 m0, m0, 4096")
    e("  s_lshr_b64 s[30:31], s[30:31], 4")
    for q in range(4):
        e(f"  buffer_load_dwordx4 v{14+q}, s[24:27], s43 offen offset:{1024*q} lds")
    e("  s_add_u32 m0, m0, 4096")
    e("  s_add_u32 s43, s43, 65536")
    e("  buffer_load_dwordx4 v14, s[24:27], s43 offen lds")
    e("  s_add_u32 s40, s40, 16384")
    e("  buffer_load_dwordx4 v15, s[24:27], s43 offen offset:1024 lds")
    e("  s_cmp_lt_u32 s40, 262144")
    e("  buffer_load_dwordx4 v16, s[24:27], s43 offen offset:2048 lds")
    e("  buffer_load_dwordx4 v17, s[24:27], s43 offen offset:3072 lds")
    e("  s_cbranch_scc1 L_load")
    if o.stamps:
        e("  s_waitcnt lgkmcnt(0)")
        e("  v_writelane_b32 v60, s94, 16")
    g.sn = 15
    for n in (32, 16, 0):
        e(f"  s_waitcnt vmcnt({n})")
        e("  s_barrier")
        g.stamp()
    if o.stamps:
        for i in range(13):
            e(f"  v_readlane_b32 s{56+2*(2+i)}, v60, {4+i}")
        e("  s_nop 4")
        g.dump(g.sn)
    e("  s_endpgm")
    g.sn = 1
    e("L_cons:")
    e("  s_load_dwordx8 s[8:15], s[0:1], 16")
    e("  s_load_dwordx2 s[16:17], s[0:1], 48")
    if o.pf:
        e("  s_getpc_b64 s[48:49]")
        e("L_pc:")
        e("  v_lshlrev_b32 v1, 6, v0")
        e(f"  v_subrev_u32 v1, 4096, v1")
        e(f"  v_min_u32 v1, L_end-L_pc, v1")
        e("  global_load_dword v40, v1, s[48:49]")
    e("  s_sub_u32 s40, s38, 1")
    e("  s_lshr_b32 s41, s40, 1")
    e("  s_and_b32 s42, s40, 1")
    e("  v_and_b32 v1, 63, v0")
    e("  v_and_b32 v8, 31, v0")
    e("  s_lshl_b32 s43, s41, 6")
    e("  s_lshl_b32 s39, s35, 7")
    e("  s_add_u32 s43, s43, s39")
    e("  v_lshl_add_u32 v9, v8, 1, s43")
    e("  v_bfe_u32 v16, v0, 5, 1")
    e("  v_bfe_u32 v15, v0, 1, 3")
    e("  v_xor_b32 v15, v15, v16")
    e("  v_lshlrev_b32 v15, 4, v15")
    e("  v_lshl_add_u32 v14, v8, 7, v15")
    e("  s_lshl_b32 s44, s42, 12")
    e("  v_add_u32 v24, s44, v14")
    e("  v_xor_b32 v25, 32, v24")
    e("  v_xor_b32 v26, 64, v24")
    e("  v_xor_b32 v27, 0x60, v24")
    e("  v_bfe_u32 v15, v0, 2, 2")
    e("  v_lshlrev_b32 v14, 7, v15")
    e("  v_lshl_add_u32 v14, v16, 10, v14")
    e("  v_lshrrev_b32 v15, 1, v15")
    e("  v_xor_b32 v15, s41, v15")
    e("  v_lshl_add_u32 v14, v15, 6, v14")
    e("  v_and_b32 v15, 1, v0")
    e("  v_lshl_add_u32 v14, v15, 5, v14")
    e("  v_bfe_u32 v15, v0, 4, 1")
    e("  v_lshl_add_u32 v14, v15, 4, v14")
    e("  v_bfe_u32 v15, v0, 1, 1")
    e("  v_lshl_add_u32 v14, v15, 3, v14")
    e("  v_add_u32 v28, 8192, v14")
    e("  s_waitcnt lgkmcnt(0)")
    e("  global_load_ushort v20, v9, s[8:9]")
    e("  global_load_ushort v21, v9, s[10:11]")
    e("  global_load_ushort v22, v9, s[12:13]")
    e("  global_load_ushort v23, v9, s[14:15]")
    g.stamp()
    for i in range(5):
        e(f"  v_add_u32 v{29+i}, 65536, v{24+i}")
    e("  s_lshl_b32 s44, s34, 6")
    e("  s_lshl_b32 s45, s42, 5")
    e("  s_add_u32 s44, s44, s45")
    e("  v_add_u32 v17, s44, v8")
    e("  v_lshlrev_b32 v17, 11, v17")
    e("  v_lshlrev_b32 v18, 5, v16")
    e("  v_add3_u32 v17, v17, v18, s43")
    e("  s_lshl_b32 s44, s40, 8")
    e(f"  s_add_u32 s44, s44, {PAR}")
    e("  v_lshl_add_u32 v18, v8, 2, s44")
    e("  v_lshl_add_u32 v19, v16, 6, s44")
    e("  s_mov_b32 s46, 0xbfb8aa3b")
    e("  s_mov_b32 s47, 0xbfb8aa3b")
    S0, T0, ACC = 112, 128, 144
    FR = [48, 80]
    par = [
        "  v_lshlrev_b32 v21, 16, v21",
        "  v_add_f32 v21, 0x3727c5ac, v21",
        "  v_cvt_pk_bf16_f32 v21, v21, v21",
        "  v_lshlrev_b32 v21, 16, v21",
        "  v_sqrt_f32 v21, v21",
        "  v_lshlrev_b32 v20, 16, v20",
        "  v_cvt_pk_bf16_f32 v21, v21, v21",
        "  v_lshlrev_b32 v21, 16, v21",
        "  v_rcp_f32 v21, v21",
        "  v_lshlrev_b32 v22, 16, v22",
        "  v_cvt_pk_bf16_f32 v21, v21, v21",
        "  v_lshlrev_b32 v21, 16, v21",
        "  v_mul_f32 v21, v21, v22",
        "  v_cvt_pk_bf16_f32 v21, v21, v21",
        "  v_lshlrev_b32 v21, 16, v21",
        "  v_lshlrev_b32 v23, 16, v23",
        "  v_fma_f32 v23, -v20, v21, v23",
        "  v_mul_f32 v21, s46, v21",
        "  v_mul_f32 v23, s46, v23",
    ]
    def params():
        e("  s_waitcnt vmcnt(0)")
        for s in par: e(s)
        e("  ds_write2_b32 v18, v21, v23 offset0:0 offset1:32")
        e("  s_waitcnt lgkmcnt(0)")
        for i in range(4):
            e(f"  ds_read_b128 v[{S0+4*i}:{S0+4*i+3}], v19 offset:{16*i}")
            e(f"  ds_read_b128 v[{T0+4*i}:{T0+4*i+3}], v19 offset:{128+16*i}")
        e("  s_waitcnt lgkmcnt(0)")
    if o.parc < 0: params()
    def reads(c, ks):
        slot = c % 8; b = slot // 4; off = (slot % 4) * 16384; f = FR[c & 1]
        e(f"  ds_read_b128 v[{f+4*ks}:{f+4*ks+3}], v{24+5*b+ks} offset:{off}")
        e(f"  ds_read_b64_tr_b16 v[{f+16+4*ks}:{f+16+4*ks+1}], v{28+5*b} offset:{off+2048*ks}")
        e(f"  ds_read_b64_tr_b16 v[{f+16+4*ks+2}:{f+16+4*ks+3}], v{28+5*b} offset:{off+2048*ks+512}")
    def mfma(c, ks):
        f = FR[c & 1]
        src = "0" if (c == 0 and ks == 0) else f"v[{ACC}:{ACC+15}]"
        e(f"  v_mfma_f32_32x32x16_bf16 v[{ACC}:{ACC+15}], v[{f+16+4*ks}:{f+16+4*ks+3}], v[{f+4*ks}:{f+4*ks+3}], {src}")
    for c in range(16):
        e("  s_barrier")
        fill = []
        if c == o.parc:
            e("  s_waitcnt vmcnt(0)")
            fill = list(par)
        extra = 0
        for ks in range(4):
            reads(c, ks)
            if 1 <= c <= 14:
                e(f"  s_waitcnt lgkmcnt({12})")
                mfma(c - 1, ks)
            for s_ in fill[5*ks:5*ks+5]: e(s_)
        if c == o.parc:
            e("  ds_write2_b32 v18, v21, v23 offset0:0 offset1:32")
            e("  s_waitcnt lgkmcnt(0)")
        if c == o.parc + 1 and o.parc >= 0:
            e("  s_waitcnt lgkmcnt(6)")
            for i in range(4):
                e(f"  ds_read_b128 v[{S0+4*i}:{S0+4*i+3}], v19 offset:{16*i}")
                e(f"  ds_read_b128 v[{T0+4*i}:{T0+4*i+3}], v19 offset:{128+16*i}")
            e("  s_waitcnt lgkmcnt(0)")
        if c >= 14:
            for ks in range(4):
                e(f"  s_waitcnt lgkmcnt({9-3*ks})")
                mfma(c, ks)
    g.stamp()
    e("  s_nop 7")
    e("  s_nop 3")
    U, E, O = 48, 64, 80
    for h in range(2):
        R = range(4*h, 4*h+4)
        for p in R:
            e(f"  v_pk_fma_f32 v[{U+2*p}:{U+2*p+1}], v[{ACC+2*p}:{ACC+2*p+1}], v[{S0+2*p}:{S0+2*p+1}], v[{T0+2*p}:{T0+2*p+1}]")
        for p in R:
            e(f"  v_exp_f32 v{E+2*p}, v{U+2*p}")
            e(f"  v_exp_f32 v{E+2*p+1}, v{U+2*p+1}")
        for p in R:
            e(f"  v_pk_fma_f32 v[{E+2*p}:{E+2*p+1}], v[{E+2*p}:{E+2*p+1}], s[46:47], s[46:47]")
        for p in R:
            e(f"  v_rcp_f32 v{E+2*p}, v{E+2*p}")
            e(f"  v_rcp_f32 v{E+2*p+1}, v{E+2*p+1}")
        for p in R:
            e(f"  v_pk_mul_f32 v[{U+2*p}:{U+2*p+1}], v[{U+2*p}:{U+2*p+1}], v[{E+2*p}:{E+2*p+1}]")
        for p in R:
            e(f"  v_cvt_pk_bf16_f32 v{O+p}, v{U+2*p}, v{U+2*p+1}")
        e(f"  global_store_dwordx4 v17, v[{O+4*h}:{O+4*h+3}], s[16:17] offset:{16*h} {o.stpol.replace('_',' ')}")
    g.stamp()
    if o.stamps:
        e("  s_waitcnt vmcnt(0)")
        g.stamp()
        g.dump(g.sn)
    e("L_end:")
    e("  s_endpgm")
    e('.section .rodata,"a"')
    e(".p2align 6")
    e(f".amdhsa_kernel {NAME}")
    e("  .amdhsa_next_free_vgpr 160")
    e("  .amdhsa_next_free_sgpr 96")
    e("  .amdhsa_accum_offset 160")
    e("  .amdhsa_group_segment_fixed_size 0")
    e("  .amdhsa_kernarg_size 72")
    e("  .amdhsa_user_sgpr_count 2")
    e("  .amdhsa_user_sgpr_kernarg_segment_ptr 1")
    e("  .amdhsa_system_sgpr_workgroup_id_x 1")
    e("  .amdhsa_float_denorm_mode_32 3")
    e(".end_amdhsa_kernel")
    return "\n".join(g.L) + "\n"

if __name__ == "__main__":
    ap = argparse.ArgumentParser()
    ap.add_argument("-o", default="-")
    ap.add_argument("--sched", default="rot1")
    ap.add_argument("--stamps", type=int, default=0)
    ap.add_argument("--pf", type=int, default=1)
    ap.add_argument("--stpol", default="")
    ap.add_argument("--parc", type=int, default=3)
    o = ap.parse_args()
    s = gen(o)
    if o.o == "-": sys.stdout.write(s)
    else: open(o.o, "w").write(s)
```

```python
import argparse, sys
NU = 32
def coords(wg, lay="42"):
    xcd, idx = wg & 7, wg >> 3
    i, j = idx >> 3, idx & 7
    xm, xn = xcd >> 1, xcd & 1
    return xcd, i, j, xm, xn, 4 * xm + i, 8 * xn + j
def pairs(order):
    u = []
    for c in order: u += [("a", c), ("b", c)]
    return u
def moved(base, own, pos):
    rest = [c for c in base if c not in own]
    return rest[:pos] + list(own) + rest[pos:]
def schedule(name, wg):
    xcd, i, j, xm, xn, tm, tn = coords(wg)
    p = name.split("_")
    k = p[0]; arg = [int(x) for x in p[1:]]
    if k == "rot0": return pairs(range(16))
    if k == "rot1":
        r = 2 * ((j + 2 * i + (xm & 1)) & 7); return pairs([(c + r) & 15 for c in range(16)])
    if k == "lat":
        r = (tm + tn) & 15; return pairs([(c + r) & 15 for c in range(16)])
    if k == "xrot":
        r = (4 * xm + 8 * xn) & 15; return pairs([(c + r) & 15 for c in range(16)])
    if k == "own":
        return pairs(moved(range(16), [(tm + tn) & 15], arg[0]))
    if k == "jit":
        c = (tm + tn) & 15
        return pairs(moved(range(16), [c], max(0, c - arg[0])))
    if k == "duty":
        D = arg[0]; ph = (4 * xm + 8 * xn) & 15 if len(arg) > 1 and arg[1] else 0
        q = (i + j) & 3
        own = list(range(4 * q, 4 * q + 4))
        o = moved(range(16), own, max(0, 4 * q - D))
        return pairs([(c + ph) & 15 for c in o])
    if k == "duty2":
        D = arg[0]; ph = (4 * xm + 8 * xn) & 15 if len(arg) > 1 and arg[1] else 0
        q = (i + j) & 3
        o = list(range(16))
        o = moved(o, [2 * q + 8, 2 * q + 9], max(0, 2 * q + 8 - D))
        pos = max(0, 2 * q - D)
        o2 = [c for c in o if c not in (2 * q, 2 * q + 1)]
        o = o2[:pos] + [2 * q, 2 * q + 1] + o2[pos:]
        return pairs([(c + ph) & 15 for c in o])
    if k == "grp":
        G, P = arg[0], arg[1]; ph = (4 * xm + 8 * xn) & 15 if len(arg) > 2 and arg[2] else 0
        q = ((i + j) % P) * (G // P)
        o = [g + ((c + q) % G) for g in range(0, 16, G) for c in range(G)]
        return pairs([(c + ph) & 15 for c in o])
    raise SystemExit("unknown schedule " + name)
def entry(wg, u):
    xcd, i, j, xm, xn, tm, tn = coords(wg)
    t, c = u
    if t == "a": return tm * 64 * 2048 + c * 128
    return 0x80000000 | (c * 64 * 2048 + tn * 128)
def gen(o):
    L = []; e = L.append
    name = "standalone__batchnorm__sampling_kernel"
    e(f"; @launch grid=(256,1,1) block=(64,1,1) lds=135168")
    e('.amdgcn_target "amdgcn-amd-amdhsa--gfx950"')
    e(".text"); e(f".globl {name}"); e(".p2align 8"); e(f".type {name},@function"); e(f"{name}:")
    sn = [0]
    def stamp():
        i = sn[0]; sn[0] += 1
        e(f"  s_memtime s[{64+2*i}:{65+2*i}]")
    stamp()
    e("  s_load_dwordx2 s[14:15], s[0:1], 64")
    e("  s_load_dwordx4 s[4:7], s[0:1], 0")
    e("  s_getpc_b64 s[8:9]")
    e("  s_and_b32 s8, s8, 0xffffff00")
    e("  v_lshlrev_b32 v1, 6, v0")
    e(f"  v_min_u32 v1, L_end-{name}, v1")
    e("  global_load_dword v40, v1, s[8:9]")
    e(f"  s_lshl_b32 s10, s2, 7")
    e(f"  s_add_u32 s10, s10, L_tab-{name}")
    e("  s_load_dwordx16 s[32:47], s[8:9], s10")
    e("  s_add_u32 s10, s10, 64")
    e("  s_load_dwordx16 s[48:63], s[8:9], s10")
    e("  v_lshrrev_b32 v2, 3, v0"); e("  v_lshlrev_b32 v2, 11, v2")
    e("  v_and_b32 v3, 7, v0"); e("  v_lshlrev_b32 v3, 4, v3")
    e("  v_add_u32 v10, v2, v3")
    for g in range(1, 8): e(f"  v_add_u32 v{10+g}, {g*16384-(g%4)*1024}, v10")
    e("  s_mov_b32 s22, 0x200000"); e("  s_mov_b32 s23, 0x20000")
    e("  s_waitcnt lgkmcnt(0)")
    e("  s_add_u32 s6, s6, 0x200000"); e("  s_addc_u32 s7, s7, 0")
    if o.swz:
        e("  v_lshrrev_b32 v4, 4, v0"); e("  v_lshlrev_b32 v4, 4, v4")
        for g in range(8): e(f"  v_xor_b32 v{10+g}, v4, v{10+g}")
    e("  s_mov_b32 s12, 0")
    e("L_pass:")
    stamp()
    for u in range(NU):
        e(f"  s_bitcmp1_b32 s{32+u}, 31")
        e("  s_cselect_b64 s[20:21], s[6:7], s[4:5]")
        e(f"  s_and_b32 s11, s{32+u}, 0x7fffffff")
        for h in range(2):
            e(f"  s_mov_b32 m0, {(u%16)*8192+h*4096}")
            if u >= 7 and h == 0: e("  s_waitcnt vmcnt(55)")
            else: e("  s_nop 0")
            for g in range(4):
                e(f"  buffer_load_dwordx4 v{10+4*h+g}, s[20:23], s11 offen offset:{1024*g} lds")
        if u % 2 == 1: stamp()
    e("  s_waitcnt vmcnt(0)")
    stamp()
    e("  s_add_u32 s12, s12, 1")
    e(f"  s_cmp_lt_u32 s12, {o.passes}")
    e("  s_cbranch_scc1 L_pass")
    n = sn[0]
    assert 64 + 2 * n <= 102
    e("  s_waitcnt lgkmcnt(0) vmcnt(0)")
    e(f"  s_lshl_b32 s31, s2, 7")
    e("  v_mov_b32 v1, s31")
    for i in range(32):
        e(f"  v_mov_b32 v{20+i}, " + (f"s{64+2*i}" if i < n else "0"))
    e("  s_mov_b64 exec, 1")
    for i in range(8):
        e(f"  global_store_dwordx4 v1, v[{20+4*i}:{23+4*i}], s[14:15] offset:{16*i}")
    e("L_end:")
    e("  s_endpgm")
    e(".p2align 8")
    e(".type L_tab,@object")
    e("L_tab:")
    for wg in range(256):
        s = schedule(o.sched, wg)
        assert sorted(s) == sorted(pairs(range(16))), s
        e("  .long " + ", ".join(hex(entry(wg, u)) for u in s))
    e(".size L_tab, 32768")
    e('.section .rodata,"a"'); e(".p2align 6"); e(f".amdhsa_kernel {name}")
    e("  .amdhsa_next_free_vgpr 64"); e("  .amdhsa_next_free_sgpr 102"); e("  .amdhsa_accum_offset 64")
    e("  .amdhsa_group_segment_fixed_size 0"); e("  .amdhsa_kernarg_size 72"); e("  .amdhsa_user_sgpr_count 2")
    e("  .amdhsa_user_sgpr_kernarg_segment_ptr 1"); e("  .amdhsa_system_sgpr_workgroup_id_x 1")
    e(".end_amdhsa_kernel")
    return "\n".join(L) + "\n"
if __name__ == "__main__":
    for s in sys.argv[1:]:
        class O:
            sched = s.split("+")[0]; passes = 2 if "+p2" in s else 1; swz = "+z" in s
        open(f"m7_{s}.s", "w").write(gen(O))
```

```python
import sys, argparse
from gen2 import HEADER, NAME, move_nibbles

class G:
    def __init__(self, o):
        self.o = o; self.L = []; self.sn = 0
    def e(self, s): self.L.append(s)
    def stamp(self, real=False):
        i = self.sn; self.sn += 1
        if self.o.stamps:
            self.e(f"  {'s_memrealtime' if real else 's_memtime'} s[{56+2*i}:{57+2*i}]")
    def dump(self, n):
        e = self.e
        e("  s_waitcnt lgkmcnt(0) vmcnt(0)")
        e("  s_mul_i32 s44, s2, 5")
        e("  s_add_u32 s44, s44, s38")
        e("  s_lshl_b32 s44, s44, 7")
        e("  v_mov_b32 v1, s44")
        for i in range(32):
            e(f"  v_mov_b32 v{20+i}, " + (f"s{56+2*i}" if i < n else "0"))
        e("  s_mov_b64 exec, 1")
        for i in range(8):
            e(f"  global_store_dwordx4 v1, v[{20+4*i}:{23+4*i}], s[54:55] offset:{16*i}")

def add_phase(e, reg):
    e(f"  s_and_b32 {reg}, {reg}, 15")
    e(f"  s_mul_i32 {reg}, {reg}, 0x01010101")
    for r in ("s30", "s31"):
        e(f"  s_and_b32 s46, {r}, 0x0f0f0f0f")
        e(f"  s_add_u32 s46, s46, {reg}")
        e(f"  s_and_b32 s46, s46, 0x0f0f0f0f")
        e(f"  s_lshr_b32 s47, {r}, 4")
        e(f"  s_and_b32 s47, s47, 0x0f0f0f0f")
        e(f"  s_add_u32 s47, s47, {reg}")
        e(f"  s_and_b32 s47, s47, 0x0f0f0f0f")
        e(f"  s_lshl4_add_u32 {r}, s47, s46")

def gen(o):
    g = G(o); e = g.e
    PAR = 131072
    lds = PAR + 512
    e(HEADER.rstrip())
    e(f"; @launch grid=(256,1,1) block=(320,1,1) lds={lds}")
    e('.amdgcn_target "amdgcn-amd-amdhsa--gfx950"')
    e(".text")
    if o.align:
        e(".p2align 12")
        npad = (13 + o.koff) % 16 if o.rawpad < 0 else o.rawpad
        if npad: e(f".fill {npad * 64}, 4, 0xbf800000")
    e(f".globl {NAME}"); e(".p2align 8"); e(f".type {NAME},@function"); e(f"{NAME}:")
    g.stamp()
    e("  s_load_dwordx16 s[4:19], s[0:1], 0")
    g.stamp(real=True)
    e("  s_cmp_ge_u32 s2, 256")
    e("  s_cbranch_scc1 L_end")
    if o.stamps: e("  s_load_dwordx2 s[54:55], s[0:1], 64")
    e("  v_lshrrev_b32 v2, 6, v0")
    e("  s_getpc_b64 s[48:49]")
    e("L_pc:")
    e("  v_readfirstlane_b32 s38, v2")
    e("  s_bfe_u32 s28, s2, 0x20006")
    e("  s_bfe_u32 s29, s2, 0x30003")
    e("  s_bfe_u32 s32, s2, 0x20001")
    e("  s_and_b32 s33, s2, 1")
    e("  s_lshl2_add_u32 s34, s32, s28")
    e("  s_lshl3_add_u32 s35, s33, s29")
    e("  s_cmp_eq_u32 s38, 0")
    e("  s_cbranch_scc1 L_loader")
    if o.pf:
        e("  v_lshlrev_b32 v1, 6, v0")
        e(f"  v_subrev_u32 v1, {4096-640}, v1")
        e(f"  v_min_u32 v1, L_end-L_pc, v1")
        e("  global_load_dword v40, v1, s[48:49]")
    e("  s_branch L_cons")
    e("L_loader:")
    p = o.sched.split("_"); k = p[0]; arg = [int(x) for x in p[1:]] if k != "tab" else []
    if k == "tab":
        e("  s_lshl_b32 s40, s2, 3")
        e("  s_add_u32 s40, s40, L_tab-L_pc")
        e("  s_load_dwordx2 s[30:31], s[48:49], s40")
    e("  v_lshrrev_b32 v3, 3, v0")
    e("  v_lshlrev_b32 v3, 11, v3")
    e("  v_and_b32 v5, 7, v0")
    e("  v_lshrrev_b32 v6, 4, v0")
    e("  v_xor_b32 v7, v5, v6")
    e("  s_lshl_b32 s36, s34, 17")
    e("  v_lshl_add_u32 v10, v7, 4, v3")
    e("  v_add_u32 v10, s36, v10")
    e("  v_xor_b32 v11, 64, v10")
    e("  v_add_u32 v11, 15360, v11")
    e("  v_add_u32 v12, 30720, v10")
    e("  v_add_u32 v13, 30720, v11")
    for q in range(4): e(f"  v_add_u32 v{14+q}, 65536, v{10+q}")
    e("  v_lshlrev_b32 v6, 2, v6")
    e("  v_and_b32 v6, 4, v6")
    e("  v_xor_b32 v7, v5, v6")
    e("  s_lshl_b32 s37, s35, 7")
    e("  v_lshl_add_u32 v9, v0, 1, s37")
    e("  s_bitset1_b32 s37, 21")
    e("  v_lshl_add_u32 v18, v7, 4, v3")
    e("  v_add_u32 v18, s37, v18")
    for q in range(1, 8): e(f"  v_add_u32 v{18+q}, {16384*q-1024*(q%4)}, v18")
    e("  s_mov_b32 s22, 0x200000")
    e("  s_mov_b32 s23, 0x20000")
    e("  s_mov_b32 s26, 0x400000")
    e("  s_mov_b32 s27, 0x20000")
    if k != "tab":
        e("  s_mov_b32 s30, 0x76543210")
        e("  s_mov_b32 s31, 0xfedcba98")
    if k in ("rot0", "tab"):
        pass
    elif k == "rot1":
        e("  s_lshl1_add_u32 s39, s28, s29")
        e("  s_and_b32 s40, s32, 1")
        e("  s_add_u32 s39, s39, s40")
        e("  s_lshl_b32 s39, s39, 1")
        add_phase(e, "s39")
    elif k == "jit":
        e("  s_add_u32 s40, s34, s35")
        e("  s_and_b32 s40, s40, 15")
        e("  s_lshl_b32 s40, s40, 2")
        e(f"  s_sub_i32 s41, s40, {4*arg[0]}")
        e("  s_max_i32 s41, s41, 0")
        move_nibbles(e, "s40", "s41", 1)
    elif k == "duty2":
        e("  s_add_u32 s40, s28, s29")
        e("  s_and_b32 s40, s40, 3")
        e("  s_lshl_b32 s42, s40, 3")
        e(f"  s_sub_i32 s41, s42, {4*arg[0]}")
        e("  s_max_i32 s41, s41, 0")
        move_nibbles(e, "s42", "s41", 2)
        e("  s_add_u32 s42, s42, 32")
        e(f"  s_sub_i32 s41, s42, {4*arg[0]}")
        move_nibbles(e, "s42", "s41", 2)
        e("  s_lshl1_add_u32 s39, s33, s32")
        e("  s_lshl_b32 s39, s39, 2")
        add_phase(e, "s39")
    else:
        raise SystemExit("sched")
    def decode(n):
        r = "s30" if n < 8 else "s31"
        a, b = ("s42", "s43") if n % 2 == 0 else ("s40", "s41")
        return [f"  s_bfe_u32 {a}, {r}, {0x40000 + 4*(n%8)}", f"  s_lshl_b32 {b}, {a}, 17", f"  s_lshl_b32 {a}, {a}, 7"]
    e("  s_mov_b32 m0, 0")
    if k != "tab":
        for s in decode(0): e(s)
    e("  s_waitcnt lgkmcnt(0)")
    if k == "tab":
        for s in decode(0): e(s)
    e("  s_mov_b64 s[20:21], s[4:5]")
    g.stamp()
    AH = o.ahead
    npar = 4
    for n in range(16):
        a, b = ("s42", "s43") if n % 2 == 0 else ("s40", "s41")
        base = (n % 8) * 16384
        ld = []
        for q in range(8): ld.append(f"  buffer_load_dwordx4 v{10+q}, s[20:23], {a} offen offset:{1024*(q%4)} lds")
        for q in range(8): ld.append(f"  buffer_load_dwordx4 v{18+q}, s[24:27], {b} offen offset:{1024*(q%4)} lds")
        nxt = decode(n + 1) if n < 15 else ["  s_nop 0"] * 3
        for q in range(16):
            if q == AH and n >= 3:
                if n == 3 and o.parpos >= 0:
                    e(f"  s_waitcnt vmcnt({32 + AH + 16 - o.parpos})")
                    for s in PARAM: e(s)
                    e(f"  v_lshlrev_b32 v9, 3, v0")
                    e(f"  v_add_u32 v9, {PAR}, v9")
                    e("  ds_write_b64 v9, v[30:31]")
                    e(f"  s_waitcnt vmcnt({32+AH}) lgkmcnt(0)")
                else:
                    e(f"  s_waitcnt vmcnt({32+AH})")
                e("  s_barrier")
                g.stamp()
            if n == 0 and q == o.parpos:
                for i in range(4): e(f"  global_load_ushort v{26+i}, v9, s[{8+2*i}:{9+2*i}]")
            e(ld[q])
            if n == 0 and q == 0: e("  s_mov_b64 s[24:25], s[6:7]")
            if q % 4 == 3:
                nb = base + 4096 * (q // 4 + 1) if q < 15 else ((n + 1) % 8) * 16384
                if not (n == 15 and q == 15):
                    e(f"  s_mov_b32 m0, {nb}")
                    e(nxt[q // 4] if q < 15 else "  s_nop 0")
    for n in (32, 16, 0):
        e(f"  s_waitcnt vmcnt({n})")
        e("  s_barrier")
        g.stamp()
    if o.stamps: g.dump(g.sn)
    e("  s_endpgm")
    g.sn = 2
    if o.align and o.coff >= 0:
        e(".p2align 12")
        if o.coff: e(f".fill {o.coff}, 4, 0xbf800000")
    e("L_cons:")
    e("  s_sub_u32 s40, s38, 1")
    e("  s_lshr_b32 s41, s40, 1")
    e("  s_and_b32 s42, s40, 1")
    e("  v_and_b32 v8, 31, v0")
    e("  v_bfe_u32 v16, v0, 5, 1")
    e("  v_bfe_u32 v15, v0, 1, 3")
    e("  v_xor_b32 v15, v15, v16")
    e("  v_lshlrev_b32 v15, 4, v15")
    e("  v_lshl_add_u32 v14, v8, 7, v15")
    e("  s_lshl_b32 s44, s42, 12")
    e("  v_add_u32 v24, s44, v14")
    e("  v_xor_b32 v25, 32, v24")
    e("  v_xor_b32 v26, 64, v24")
    e("  v_xor_b32 v27, 0x60, v24")
    e("  v_bfe_u32 v15, v0, 2, 2")
    e("  v_lshlrev_b32 v14, 7, v15")
    e("  v_lshl_add_u32 v14, v16, 10, v14")
    e("  v_lshrrev_b32 v15, 1, v15")
    e("  v_xor_b32 v15, s41, v15")
    e("  v_lshl_add_u32 v14, v15, 6, v14")
    e("  v_bfe_u32 v15, v0, 4, 1")
    e("  v_lshl_add_u32 v14, v15, 5, v14")
    e("  v_and_b32 v15, 3, v0")
    e("  v_lshl_add_u32 v14, v15, 3, v14")
    e("  v_add_u32 v28, 8192, v14")
    for i in range(5):
        e(f"  v_add_u32 v{29+i}, 65536, v{24+i}")
    e("  s_lshl1_add_u32 s44, s34, s42")
    e("  s_lshl_b32 s44, s44, 16")
    e("  s_lshl1_add_u32 s45, s35, s41")
    e("  s_lshl_b32 s45, s45, 6")
    e("  s_add_u32 s44, s44, s45")
    e("  s_add_u32 s44, s44, 4096")
    e("  v_lshlrev_b32 v17, 13, v16")
    e("  v_lshl_add_u32 v17, v8, 1, v17")
    e("  v_add_u32 v17, s44, v17")
    e("  s_lshl_b32 s44, s41, 8")
    e(f"  s_add_u32 s44, s44, {PAR}")
    e("  v_lshl_add_u32 v21, v8, 3, s44")
    e("  s_mov_b32 s46, 0xbfb8aa3b")
    e("  s_mov_b32 s47, 0xbfb8aa3b")
    e("  s_waitcnt lgkmcnt(0)")
    ACC = 112
    FR = [48, 80]
    def reads(c, ks):
        if o.x_noread and c > 1: return
        slot = c % 8; b = slot // 4; off = (slot % 4) * 16384; f = FR[c & 1]
        e(f"  ds_read_b128 v[{f+4*ks}:{f+4*ks+3}], v{24+5*b+ks} offset:{off}")
        e(f"  ds_read_b64_tr_b16 v[{f+16+4*ks}:{f+16+4*ks+1}], v{28+5*b} offset:{off+2048*ks}")
        e(f"  ds_read_b64_tr_b16 v[{f+16+4*ks+2}:{f+16+4*ks+3}], v{28+5*b} offset:{off+2048*ks+512}")
    def mfma(c, ks):
        f = FR[c & 1]
        if o.x_mfma == "none": return
        if o.x_mfma == "16":
            for h in range(2):
                t = ACC + 4 * ((2 * ks + h) % 4)
                e(f"  v_mfma_f32_16x16x32_bf16 v[{t}:{t+3}], v[{f+4*ks}:{f+4*ks+3}], v[{f+16+4*ks}:{f+16+4*ks+3}], v[{t}:{t+3}]")
            return
        if o.x_mfma == "half" and ks % 2: return
        src = "0" if (c == 0 and ks == 0) else f"v[{ACC}:{ACC+15}]"
        e(f"  v_mfma_f32_32x32x16_bf16 v[{ACC}:{ACC+15}], v[{f+4*ks}:{f+4*ks+3}], v[{f+16+4*ks}:{f+16+4*ks+3}], {src}")
    for c in range(16):
        e("  s_barrier")
        if c == 0: e("  ds_read_b64 v[22:23], v21")
        for ks in range(4):
            reads(c, ks)
            if 1 <= c <= 14:
                e(f"  s_waitcnt lgkmcnt(12)")
                mfma(c - 1, ks)
        if c >= 14:
            for ks in range(4):
                e(f"  s_waitcnt lgkmcnt({9-3*ks})")
                mfma(c, ks)
    g.stamp()
    for a in range(1, 4): e(f"  v_add_u32 v{17+a}, {16384*a}, v17")
    if o.vnop:
        for i in range(9): e("  v_mov_b32 v2, v3")
    else:
        e("  s_nop 8")
    U, E, O = 48, 64, 80
    pol = o.stpol.replace('_', ' ')
    def st1(p): return [f"  v_pk_fma_f32 v[{U+2*p}:{U+2*p+1}], v[{ACC+2*p}:{ACC+2*p+1}], v[22:23], v[22:23] op_sel:[0,0,1] op_sel_hi:[1,0,1]"]
    def st2(p): return [f"  v_exp_f32 v{E+2*p}, v{U+2*p}", f"  v_exp_f32 v{E+2*p+1}, v{U+2*p+1}"]
    def st3(p): return [f"  v_pk_fma_f32 v[{E+2*p}:{E+2*p+1}], v[{E+2*p}:{E+2*p+1}], s[46:47], s[46:47]"]
    def st4(p): return [f"  v_rcp_f32 v{E+2*p}, v{E+2*p}", f"  v_rcp_f32 v{E+2*p+1}, v{E+2*p+1}"]
    def st5(p): return [f"  v_pk_mul_f32 v[{U+2*p}:{U+2*p+1}], v[{U+2*p}:{U+2*p+1}], v[{E+2*p}:{E+2*p+1}]"]
    def st6(p): return [f"  v_cvt_pk_bf16_f32 v{O+p}, v{U+2*p}, v{U+2*p+1}"]
    def st7(p):
        if o.nostore: return []
        off = -4096 + 4096 * (p % 2)
        return [f"  global_store_short v{17+p//2}, v{O+p}, s[16:17] offset:{off} {pol}",
                f"  global_store_short_d16_hi v{17+p//2}, v{O+p}, s[16:17] offset:{off+2048} {pol}"]
    B = o.eb
    for p0 in range(0, 8, B):
        R = range(p0, p0 + B)
        for st in (st1, st2, st3, st4, st5, st6, st7):
            for p in R:
                for s in st(p): e(s)
    g.stamp()
    if o.stamps:
        e("  s_waitcnt vmcnt(0)")
        g.stamp()
        g.stamp(real=True)
        g.dump(g.sn)
    e("L_end:")
    e("  s_endpgm")
    if k == "tab":
        import mb7
        e(".p2align 6")
        e(".type L_tab,@object")
        e("L_tab:")
        for wg in range(256):
            order = [c for t, c in mb7.schedule(o.sched[4:], wg) if t == "a"]
            v = sum(c << (4 * i) for i, c in enumerate(order))
            e(f"  .long {hex(v & 0xffffffff)}, {hex(v >> 32)}")
        e(".size L_tab, 2048")
    e('.section .rodata,"a"')
    e(".p2align 6")
    e(f".amdhsa_kernel {NAME}")
    e("  .amdhsa_next_free_vgpr 128")
    e("  .amdhsa_next_free_sgpr 102")
    e("  .amdhsa_accum_offset 128")
    e("  .amdhsa_group_segment_fixed_size 0")
    e("  .amdhsa_kernarg_size 72")
    e("  .amdhsa_user_sgpr_count 2")
    e("  .amdhsa_user_sgpr_kernarg_segment_ptr 1")
    e("  .amdhsa_system_sgpr_workgroup_id_x 1")
    e("  .amdhsa_float_denorm_mode_32 3")
    e(".end_amdhsa_kernel")
    return "\n".join(g.L) + "\n"

PARAM = [
    "  v_lshlrev_b32 v27, 16, v27",
    "  v_add_f32 v27, 0x3727c5ac, v27",
    "  v_cvt_pk_bf16_f32 v27, v27, v27",
    "  v_lshlrev_b32 v27, 16, v27",
    "  v_sqrt_f32 v27, v27",
    "  v_lshlrev_b32 v26, 16, v26",
    "  v_cvt_pk_bf16_f32 v27, v27, v27",
    "  v_lshlrev_b32 v27, 16, v27",
    "  v_rcp_f32 v27, v27",
    "  v_lshlrev_b32 v28, 16, v28",
    "  v_cvt_pk_bf16_f32 v27, v27, v27",
    "  v_lshlrev_b32 v27, 16, v27",
    "  v_mul_f32 v27, v27, v28",
    "  v_cvt_pk_bf16_f32 v27, v27, v27",
    "  v_lshlrev_b32 v27, 16, v27",
    "  v_lshlrev_b32 v29, 16, v29",
    "  v_fma_f32 v29, -v26, v27, v29",
    "  v_mul_f32 v30, 0xbfb8aa3b, v27",
    "  v_mul_f32 v31, 0xbfb8aa3b, v29",
]

def parse(argv):
    ap = argparse.ArgumentParser()
    ap.add_argument("-o", default="-")
    ap.add_argument("--sched", default="duty2_6")
    ap.add_argument("--stamps", type=int, default=0)
    ap.add_argument("--pf", type=int, default=1)
    ap.add_argument("--stpol", default="")
    ap.add_argument("--ahead", type=int, default=2)
    ap.add_argument("--parpos", type=int, default=0)
    ap.add_argument("--eb", type=int, default=2)
    ap.add_argument("--vnop", type=int, default=1)
    ap.add_argument("--nostore", type=int, default=0)
    ap.add_argument("--align", type=int, default=1)
    ap.add_argument("--koff", type=int, default=0)
    ap.add_argument("--rawpad", type=int, default=-1)
    ap.add_argument("--coff", type=int, default=0)
    ap.add_argument("--x_mfma", default="32")
    ap.add_argument("--x_noread", type=int, default=0)
    return ap.parse_args(argv)

if __name__ == "__main__":
    o = parse(sys.argv[1:])
    s = gen(o)
    if o.o == "-": sys.stdout.write(s)
    else: open(o.o, "w").write(s)
```

```python
import sys, argparse
from gen2 import HEADER, NAME, move_nibbles

class G:
    def __init__(self, o):
        self.o = o; self.L = []; self.sn = 0
    def e(self, s): self.L.append(s)
    def stamp(self, real=False):
        i = self.sn; self.sn += 1
        if self.o.stamps:
            self.e(f"  {'s_memrealtime' if real else 's_memtime'} s[{56+2*i}:{57+2*i}]")
    def dump(self, n):
        e = self.e
        e("  s_waitcnt lgkmcnt(0) vmcnt(0)")
        e("  s_mul_i32 s44, s2, 5")
        e("  s_add_u32 s44, s44, s38")
        e("  s_lshl_b32 s44, s44, 7")
        e("  v_mov_b32 v1, s44")
        for i in range(32):
            e(f"  v_mov_b32 v{20+i}, " + (f"s{56+2*i}" if i < n else "0"))
        e("  s_mov_b64 exec, 1")
        for i in range(8):
            e(f"  global_store_dwordx4 v1, v[{20+4*i}:{23+4*i}], s[54:55] offset:{16*i}")

def add_phase(e, reg):
    e(f"  s_and_b32 {reg}, {reg}, 15")
    e(f"  s_mul_i32 {reg}, {reg}, 0x01010101")
    for r in ("s30", "s31"):
        e(f"  s_and_b32 s46, {r}, 0x0f0f0f0f")
        e(f"  s_add_u32 s46, s46, {reg}")
        e(f"  s_and_b32 s46, s46, 0x0f0f0f0f")
        e(f"  s_lshr_b32 s47, {r}, 4")
        e(f"  s_and_b32 s47, s47, 0x0f0f0f0f")
        e(f"  s_add_u32 s47, s47, {reg}")
        e(f"  s_and_b32 s47, s47, 0x0f0f0f0f")
        e(f"  s_lshl4_add_u32 {r}, s47, s46")

def gen(o):
    g = G(o); e = g.e
    PAR = 131072
    lds = PAR + 512
    e(HEADER.rstrip())
    e(f"; @launch grid=(256,1,1) block=(320,1,1) lds={lds}")
    e('.amdgcn_target "amdgcn-amd-amdhsa--gfx950"')
    e(".text")
    if o.align:
        e(".p2align 12")
        npad = (13 + o.koff) % 16 if o.rawpad < 0 else o.rawpad
        if npad: e(f".fill {npad * 64}, 4, 0xbf800000")
    e(f".globl {NAME}"); e(".p2align 8"); e(f".type {NAME},@function"); e(f"{NAME}:")
    g.stamp()
    e("  s_load_dwordx16 s[4:19], s[0:1], 0")
    g.stamp(real=True)
    if o.xprobe: e("  s_memrealtime s[90:91]")
    e("  s_cmp_ge_u32 s2, 256")
    e("  s_cbranch_scc1 L_end")
    if o.stamps: e("  s_load_dwordx2 s[54:55], s[0:1], 64")
    e("  v_lshrrev_b32 v2, 6, v0")
    e("  s_getpc_b64 s[48:49]")
    e("L_pc:")
    e("  v_readfirstlane_b32 s38, v2")
    e("  s_bfe_u32 s28, s2, 0x20006")
    e("  s_bfe_u32 s29, s2, 0x30003")
    e("  s_bfe_u32 s32, s2, 0x20001")
    e("  s_and_b32 s33, s2, 1")
    e("  s_lshl2_add_u32 s34, s32, s28")
    e("  s_lshl3_add_u32 s35, s33, s29")
    e("  s_cmp_eq_u32 s38, 0")
    e("  s_cbranch_scc1 L_loader")
    if o.pf:
        e("  v_lshlrev_b32 v1, 6, v0")
        e(f"  v_subrev_u32 v1, {4096-640}, v1")
        e(f"  v_min_u32 v1, L_end-L_pc, v1")
        e("  global_load_dword v40, v1, s[48:49]")
    e("  s_branch L_cons")
    e("L_loader:")
    p = o.sched.split("_"); k = p[0]; arg = [int(x) for x in p[1:]] if k != "tab" else []
    if k == "tab":
        e("  s_lshl_b32 s40, s2, 3")
        e("  s_add_u32 s40, s40, L_tab-L_pc")
        e("  s_load_dwordx2 s[30:31], s[48:49], s40")
    e("  v_lshrrev_b32 v3, 3, v0")
    e("  v_lshlrev_b32 v3, 11, v3")
    e("  v_and_b32 v5, 7, v0")
    e("  v_lshrrev_b32 v6, 4, v0")
    e("  v_xor_b32 v7, v5, v6")
    e("  s_lshl_b32 s36, s34, 17")
    e("  v_lshl_add_u32 v10, v7, 4, v3")
    e("  v_add_u32 v10, s36, v10")
    e("  v_xor_b32 v11, 64, v10")
    e("  v_add_u32 v11, 15360, v11")
    e("  v_add_u32 v12, 30720, v10")
    e("  v_add_u32 v13, 30720, v11")
    for q in range(4): e(f"  v_add_u32 v{14+q}, 65536, v{10+q}")
    e("  v_lshlrev_b32 v6, 2, v6")
    e("  v_and_b32 v6, 4, v6")
    e("  v_xor_b32 v7, v5, v6")
    e("  s_lshl_b32 s37, s35, 7")
    e("  v_lshl_add_u32 v9, v0, 1, s37")
    e("  s_bitset1_b32 s37, 21")
    e("  v_lshl_add_u32 v18, v7, 4, v3")
    e("  v_add_u32 v18, s37, v18")
    for q in range(1, 8): e(f"  v_add_u32 v{18+q}, {16384*q-1024*(q%4)}, v18")
    e("  s_mov_b32 s22, 0x200000")
    e("  s_mov_b32 s23, 0x20000")
    e("  s_mov_b32 s26, 0x400000")
    e("  s_mov_b32 s27, 0x20000")
    if k != "tab":
        e("  s_mov_b32 s30, 0x76543210")
        e("  s_mov_b32 s31, 0xfedcba98")
    if k in ("rot0", "tab"):
        pass
    elif k == "rot1":
        e("  s_lshl1_add_u32 s39, s28, s29")
        e("  s_and_b32 s40, s32, 1")
        e("  s_add_u32 s39, s39, s40")
        e("  s_lshl_b32 s39, s39, 1")
        add_phase(e, "s39")
    elif k == "jit":
        e("  s_add_u32 s40, s34, s35")
        e("  s_and_b32 s40, s40, 15")
        e("  s_lshl_b32 s40, s40, 2")
        e(f"  s_sub_i32 s41, s40, {4*arg[0]}")
        e("  s_max_i32 s41, s41, 0")
        move_nibbles(e, "s40", "s41", 1)
    elif k == "duty2":
        e("  s_add_u32 s40, s28, s29")
        e("  s_and_b32 s40, s40, 3")
        e("  s_lshl_b32 s42, s40, 3")
        e(f"  s_sub_i32 s41, s42, {4*arg[0]}")
        e("  s_max_i32 s41, s41, 0")
        move_nibbles(e, "s42", "s41", 2)
        e("  s_add_u32 s42, s42, 32")
        e(f"  s_sub_i32 s41, s42, {4*arg[0]}")
        move_nibbles(e, "s42", "s41", 2)
        e("  s_lshl1_add_u32 s39, s33, s32")
        e("  s_lshl_b32 s39, s39, 2")
        add_phase(e, "s39")
    else:
        raise SystemExit("sched")
    def decode(n):
        r = "s30" if n < 8 else "s31"
        a, b = ("s42", "s43") if n % 2 == 0 else ("s40", "s41")
        return [f"  s_bfe_u32 {a}, {r}, {0x40000 + 4*(n%8)}", f"  s_lshl_b32 {b}, {a}, 17", f"  s_lshl_b32 {a}, {a}, 7"]
    e("  s_mov_b32 m0, 0")
    if k != "tab":
        for s in decode(0): e(s)
    e("  s_waitcnt lgkmcnt(0)")
    if k == "tab":
        for s in decode(0): e(s)
    e("  s_mov_b64 s[20:21], s[4:5]")
    g.stamp()
    AH = o.ahead
    npar = 4
    for n in range(16):
        a, b = ("s42", "s43") if n % 2 == 0 else ("s40", "s41")
        base = (n % 8) * 16384
        ld = []
        for q in range(8): ld.append(f"  buffer_load_dwordx4 v{10+q}, s[20:23], {a} offen offset:{1024*(q%4)} lds")
        for q in range(8): ld.append(f"  buffer_load_dwordx4 v{18+q}, s[24:27], {b} offen offset:{1024*(q%4)} lds")
        nxt = decode(n + 1) if n < 15 else ["  s_nop 0"] * 3
        for q in range(16):
            if q == AH and n >= 3:
                if n == 3 and o.parpos >= 0:
                    e(f"  s_waitcnt vmcnt({32 + AH + 16 - o.parpos})")
                    for s in PARAM: e(s)
                    e(f"  v_lshlrev_b32 v9, 3, v0")
                    e(f"  v_add_u32 v9, {PAR}, v9")
                    e("  ds_write_b64 v9, v[30:31]")
                    e(f"  s_waitcnt vmcnt({32+AH}) lgkmcnt(0)")
                else:
                    e(f"  s_waitcnt vmcnt({32+AH})")
                e("  s_barrier")
                g.stamp()
            if n == 0 and q == o.parpos:
                for i in range(4): e(f"  global_load_ushort v{26+i}, v9, s[{8+2*i}:{9+2*i}]")
            e(ld[q])
            if n == 0 and q == 0: e("  s_mov_b64 s[24:25], s[6:7]")
            if q % 4 == 3:
                nb = base + 4096 * (q // 4 + 1) if q < 15 else ((n + 1) % 8) * 16384
                if not (n == 15 and q == 15):
                    e(f"  s_mov_b32 m0, {nb}")
                    e(nxt[q // 4] if q < 15 else "  s_nop 0")
    for n in (32, 16, 0):
        e(f"  s_waitcnt vmcnt({n})")
        e("  s_barrier")
        g.stamp()
    if o.stamps: g.dump(g.sn)
    e("  s_endpgm")
    g.sn = 2
    if o.align and o.coff >= 0:
        e(".p2align 12")
        if o.coff: e(f".fill {o.coff}, 4, 0xbf800000")
    e("L_cons:")
    e("  s_sub_u32 s40, s38, 1")
    e("  s_lshr_b32 s41, s40, 1")
    e("  s_and_b32 s42, s40, 1")
    e("  v_and_b32 v8, 31, v0")
    e("  v_bfe_u32 v16, v0, 5, 1")
    e("  v_bfe_u32 v15, v0, 1, 3")
    e("  v_xor_b32 v15, v15, v16")
    e("  v_lshlrev_b32 v15, 4, v15")
    e("  v_lshl_add_u32 v14, v8, 7, v15")
    e("  s_lshl_b32 s44, s42, 12")
    e("  v_add_u32 v24, s44, v14")
    e("  v_xor_b32 v25, 32, v24")
    e("  v_xor_b32 v26, 64, v24")
    e("  v_xor_b32 v27, 0x60, v24")
    e("  v_bfe_u32 v15, v0, 2, 2")
    e("  v_lshlrev_b32 v14, 7, v15")
    e("  v_lshl_add_u32 v14, v16, 10, v14")
    e("  v_lshrrev_b32 v15, 1, v15")
    e("  v_xor_b32 v15, s41, v15")
    e("  v_lshl_add_u32 v14, v15, 6, v14")
    e("  v_bfe_u32 v15, v0, 4, 1")
    e("  v_lshl_add_u32 v14, v15, 5, v14")
    e("  v_and_b32 v15, 3, v0")
    e("  v_lshl_add_u32 v14, v15, 3, v14")
    e("  v_add_u32 v28, 8192, v14")
    for i in range(5):
        e(f"  v_add_u32 v{29+i}, 65536, v{24+i}")
    e("  s_lshl1_add_u32 s44, s34, s42")
    e("  s_lshl_b32 s44, s44, 16")
    e("  s_lshl1_add_u32 s45, s35, s41")
    e("  s_lshl_b32 s45, s45, 6")
    e("  s_add_u32 s44, s44, s45")
    e("  s_add_u32 s44, s44, 4096")
    e("  v_lshlrev_b32 v17, 13, v16")
    e("  v_lshl_add_u32 v17, v8, 1, v17")
    e("  v_add_u32 v17, s44, v17")
    e("  s_lshl_b32 s44, s41, 8")
    e(f"  s_add_u32 s44, s44, {PAR}")
    e("  v_lshl_add_u32 v21, v8, 3, s44")
    e("  s_mov_b32 s46, 0xbfb8aa3b")
    e("  s_mov_b32 s47, 0xbfb8aa3b")
    e("  s_waitcnt lgkmcnt(0)")
    ACC = 112
    FR = [48, 80]
    def reads(c, ks):
        if o.x_noread and c > 1: return
        slot = c % 8; b = slot // 4; off = (slot % 4) * 16384; f = FR[c & 1]
        e(f"  ds_read_b128 v[{f+4*ks}:{f+4*ks+3}], v{24+5*b+ks} offset:{off}")
        e(f"  ds_read_b64_tr_b16 v[{f+16+4*ks}:{f+16+4*ks+1}], v{28+5*b} offset:{off+2048*ks}")
        e(f"  ds_read_b64_tr_b16 v[{f+16+4*ks+2}:{f+16+4*ks+3}], v{28+5*b} offset:{off+2048*ks+512}")
    def mfma(c, ks):
        f = FR[c & 1]
        if o.x_mfma == "none": return
        if o.x_mfma == "16":
            for h in range(2):
                t = ACC + 4 * ((2 * ks + h) % 4)
                e(f"  v_mfma_f32_16x16x32_bf16 v[{t}:{t+3}], v[{f+4*ks}:{f+4*ks+3}], v[{f+16+4*ks}:{f+16+4*ks+3}], v[{t}:{t+3}]")
            return
        if o.x_mfma == "half" and ks % 2: return
        src = "0" if (c == 0 and ks == 0) else f"v[{ACC}:{ACC+15}]"
        e(f"  v_mfma_f32_32x32x16_bf16 v[{ACC}:{ACC+15}], v[{f+4*ks}:{f+4*ks+3}], v[{f+16+4*ks}:{f+16+4*ks+3}], {src}")
    for c in range(16):
        e("  s_barrier")
        if c == 0: e("  ds_read_b64 v[22:23], v21")
        for ks in range(4):
            reads(c, ks)
            if 1 <= c <= 14:
                e(f"  s_waitcnt lgkmcnt(12)")
                mfma(c - 1, ks)
        if c >= 14:
            for ks in range(4):
                e(f"  s_waitcnt lgkmcnt({9-3*ks})")
                mfma(c, ks)
    g.stamp()
    for a in range(1, 4): e(f"  v_add_u32 v{17+a}, {16384*a}, v17")
    if o.vnop:
        for i in range(9): e("  v_mov_b32 v2, v3")
    else:
        e("  s_nop 8")
    U, E, O = 48, 64, 80
    pol = o.stpol.replace('_', ' ')
    def st1(p): return [f"  v_pk_fma_f32 v[{U+2*p}:{U+2*p+1}], v[{ACC+2*p}:{ACC+2*p+1}], v[22:23], v[22:23] op_sel:[0,0,1] op_sel_hi:[1,0,1]"]
    def st2(p): return [f"  v_exp_f32 v{E+2*p}, v{U+2*p}", f"  v_exp_f32 v{E+2*p+1}, v{U+2*p+1}"]
    def st3(p): return [f"  v_pk_fma_f32 v[{E+2*p}:{E+2*p+1}], v[{E+2*p}:{E+2*p+1}], s[46:47], s[46:47]"]
    def st4(p): return [f"  v_rcp_f32 v{E+2*p}, v{E+2*p}", f"  v_rcp_f32 v{E+2*p+1}, v{E+2*p+1}"]
    def st5(p): return [f"  v_pk_mul_f32 v[{U+2*p}:{U+2*p+1}], v[{U+2*p}:{U+2*p+1}], v[{E+2*p}:{E+2*p+1}]"]
    def st6(p): return [f"  v_cvt_pk_bf16_f32 v{O+p}, v{U+2*p}, v{U+2*p+1}"]
    def st7(p):
        if o.nostore: return []
        off = -4096 + 4096 * (p % 2)
        return [f"  global_store_short v{17+p//2}, v{O+p}, s[16:17] offset:{off} {pol}",
                f"  global_store_short_d16_hi v{17+p//2}, v{O+p}, s[16:17] offset:{off+2048} {pol}"]
    B = o.eb
    for p0 in range(0, 8, B):
        R = range(p0, p0 + B)
        for st in (st1, st2, st3, st4, st5, st6, st7):
            for p in R:
                for s in st(p): e(s)
    g.stamp()
    if o.stamps:
        e("  s_waitcnt vmcnt(0)")
        g.stamp()
        g.stamp(real=True)
        g.dump(g.sn)
    if o.xprobe:
        x, xk, y, yk = o.xprobe.split("_")
        e("  s_waitcnt vmcnt(0)")
        e("  s_memrealtime s[92:93]")
        e("  s_waitcnt lgkmcnt(0)")
        e("  s_mov_b64 exec, 1")
        e("  v_mov_b32 v1, 0")
        e("  s_and_b32 s94, s2, 7")
        for i, (v, kk) in enumerate(((x, xk), (y, yk))):
            r = "s90" if v == "s" else "s92"
            e(f"  v_mov_b32 v2, {r}")
            if i == 1: e("  v_not_b32 v2, v2")
            if kk != "a":
                e(f"  s_cmp_eq_u32 s94, {kk}")
                e(f"  s_cbranch_scc0 L_px{i}")
            e(f"  global_atomic_umax v1, v2, s[18:19] offset:{128*i} sc1")
            e(f"L_px{i}:")
        e("  s_cmp_eq_u32 s2, 0")
        e("  s_cbranch_scc0 L_end")
        e("  s_cmp_eq_u32 s38, 1")
        e("  s_cbranch_scc0 L_end")
        e("  s_mov_b32 s95, 1500")
        for ph in range(2):
            e(f"L_sp{ph}:")
            e("  s_memrealtime s[92:93]")
            e("  s_waitcnt lgkmcnt(0)")
            e("  s_sub_u32 s92, s92, s90")
            e("  s_cmp_lt_u32 s92, s95")
            e(f"  s_cbranch_scc1 L_sp{ph}")
            if ph == 0:
                e("  global_load_dword v2, v1, s[18:19] sc0 sc1")
                e("  global_load_dword v3, v1, s[18:19] offset:128 sc0 sc1")
                e("  s_waitcnt vmcnt(0)")
                e("  v_not_b32 v3, v3")
                e("  v_sub_u32 v2, v2, v3")
                e("  v_add_u32 v2, 200, v2")
                e("  v_min_u32 v2, 2000, v2")
                e("  s_nop 0")
                e("  v_readfirstlane_b32 s95, v2")
                e("  s_nop 3")
                e("  s_mul_i32 s95, s95, 10")
    e("L_end:")
    e("  s_endpgm")
    if k == "tab":
        import mb7
        e(".p2align 6")
        e(".type L_tab,@object")
        e("L_tab:")
        for wg in range(256):
            order = [c for t, c in mb7.schedule(o.sched[4:], wg) if t == "a"]
            v = sum(c << (4 * i) for i, c in enumerate(order))
            e(f"  .long {hex(v & 0xffffffff)}, {hex(v >> 32)}")
        e(".size L_tab, 2048")
    e('.section .rodata,"a"')
    e(".p2align 6")
    e(f".amdhsa_kernel {NAME}")
    e("  .amdhsa_next_free_vgpr 128")
    e("  .amdhsa_next_free_sgpr 102")
    e("  .amdhsa_accum_offset 128")
    e("  .amdhsa_group_segment_fixed_size 0")
    e("  .amdhsa_kernarg_size 72")
    e("  .amdhsa_user_sgpr_count 2")
    e("  .amdhsa_user_sgpr_kernarg_segment_ptr 1")
    e("  .amdhsa_system_sgpr_workgroup_id_x 1")
    e("  .amdhsa_float_denorm_mode_32 3")
    e(".end_amdhsa_kernel")
    return "\n".join(g.L) + "\n"

PARAM = [
    "  v_lshlrev_b32 v27, 16, v27",
    "  v_add_f32 v27, 0x3727c5ac, v27",
    "  v_cvt_pk_bf16_f32 v27, v27, v27",
    "  v_lshlrev_b32 v27, 16, v27",
    "  v_sqrt_f32 v27, v27",
    "  v_lshlrev_b32 v26, 16, v26",
    "  v_cvt_pk_bf16_f32 v27, v27, v27",
    "  v_lshlrev_b32 v27, 16, v27",
    "  v_rcp_f32 v27, v27",
    "  v_lshlrev_b32 v28, 16, v28",
    "  v_cvt_pk_bf16_f32 v27, v27, v27",
    "  v_lshlrev_b32 v27, 16, v27",
    "  v_mul_f32 v27, v27, v28",
    "  v_cvt_pk_bf16_f32 v27, v27, v27",
    "  v_lshlrev_b32 v27, 16, v27",
    "  v_lshlrev_b32 v29, 16, v29",
    "  v_fma_f32 v29, -v26, v27, v29",
    "  v_mul_f32 v30, 0xbfb8aa3b, v27",
    "  v_mul_f32 v31, 0xbfb8aa3b, v29",
]

def parse(argv):
    ap = argparse.ArgumentParser()
    ap.add_argument("-o", default="-")
    ap.add_argument("--sched", default="duty2_6")
    ap.add_argument("--stamps", type=int, default=0)
    ap.add_argument("--pf", type=int, default=1)
    ap.add_argument("--stpol", default="")
    ap.add_argument("--ahead", type=int, default=2)
    ap.add_argument("--parpos", type=int, default=0)
    ap.add_argument("--eb", type=int, default=2)
    ap.add_argument("--vnop", type=int, default=1)
    ap.add_argument("--nostore", type=int, default=0)
    ap.add_argument("--align", type=int, default=1)
    ap.add_argument("--koff", type=int, default=0)
    ap.add_argument("--xprobe", default="")
    ap.add_argument("--rawpad", type=int, default=-1)
    ap.add_argument("--coff", type=int, default=0)
    ap.add_argument("--x_mfma", default="32")
    ap.add_argument("--x_noread", type=int, default=0)
    return ap.parse_args(argv)

if __name__ == "__main__":
    o = parse(sys.argv[1:])
    s = gen(o)
    if o.o == "-": sys.stdout.write(s)
    else: open(o.o, "w").write(s)
```

```python
def emit(e, spec, wave_reg="s38", first=1, nw=4, mult=10):
    x, xk, y, yk = spec.split("_")
    e("  s_waitcnt vmcnt(0)")
    e("  s_memrealtime s[92:93]")
    e("  s_load_dwordx2 s[96:97], s[0:1], 64")
    e("  s_waitcnt lgkmcnt(0)")
    e("  s_mov_b32 s94, s92")
    def spin(lbl, lim):
        e(f"{lbl}:")
        e("  s_memrealtime s[92:93]")
        e("  s_waitcnt lgkmcnt(0)")
        e("  s_sub_u32 s92, s92, s90")
        e(f"  s_cmp_lt_u32 s92, {lim}")
        e(f"  s_cbranch_scc1 {lbl}")
    spin("L_sp0", 1000)
    e(f"  s_sub_u32 s95, {wave_reg}, {first}")
    e(f"  s_mul_i32 s98, s2, {nw}")
    e("  s_add_u32 s95, s95, s98")
    e("  s_lshl_b32 s98, s95, 3")
    e("  v_mov_b32 v1, s98")
    e("  v_mov_b32 v2, s90")
    e("  v_mov_b32 v3, s94")
    e("  s_mov_b64 s[98:99], exec")
    e("  s_mov_b64 exec, 1")
    e("  global_store_dwordx2 v1, v[2:3], s[96:97] sc0 sc1")
    e("  s_mov_b64 exec, s[98:99]")
    e("  s_cmp_eq_u32 s95, 0")
    e("  s_cbranch_scc0 L_end")
    spin("L_sp1", 1500)
    e("  v_and_b32 v1, 63, v0")
    e("  v_lshlrev_b32 v4, 3, v1")
    n = 256 * nw // 64
    for i in range(n):
        e(f"  v_add_u32 v5, {512*i}, v4")
        e(f"  global_load_dwordx2 v[{10+2*i}:{11+2*i}], v5, s[96:97] sc0 sc1")
    e("  s_waitcnt vmcnt(0)")
    e("  s_sub_u32 s98, s90, 4096")
    ox = 0 if x == "s" else 1; oy = 0 if y == "s" else 1
    e("  v_mov_b32 v6, 0")
    e("  v_mov_b32 v7, -1")
    for i in range(n):
        e(f"  v_subrev_u32 v8, s98, v{10+2*i+ox}")
        e("  v_max_u32 v6, v6, v8")
        e(f"  v_subrev_u32 v8, s98, v{10+2*i+oy}")
        e("  v_min_u32 v7, v7, v8")
    sh = {4: 2, 1: 0, 2: 1}[nw]
    e(f"  v_bfe_u32 v8, v1, {sh}, 3")
    if xk != "a":
        e(f"  v_cmp_eq_u32 vcc, {xk}, v8"); e("  s_nop 1"); e("  v_cndmask_b32 v6, 0, v6, vcc")
    if yk != "a":
        e(f"  v_cmp_eq_u32 vcc, {yk}, v8"); e("  s_nop 1"); e("  v_cndmask_b32 v7, -1, v7, vcc")
    e("  v_mov_b32 v8, 0")
    e("  v_mov_b32 v9, -1")
    e("  ds_write_b64 v8, v[8:9]")
    e("  s_waitcnt lgkmcnt(0)")
    e("  ds_max_u32 v8, v6")
    e("  ds_min_u32 v8, v7 offset:4")
    e("  s_waitcnt lgkmcnt(0)")
    e("  ds_read_b64 v[6:7], v8")
    e("  s_waitcnt lgkmcnt(0)")
    e("  v_sub_u32 v2, v6, v7")
    e("  v_add_u32 v2, 200, v2")
    e("  v_min_u32 v2, 2000, v2")
    e("  s_nop 0")
    e("  v_readfirstlane_b32 s95, v2")
    e("  s_nop 3")
    e(f"  s_mul_i32 s95, s95, {mult}")
    spin("L_sp2", "s95")
```

```python
import sys, argparse
from gen2 import HEADER, NAME, move_nibbles

class G:
    def __init__(self, o):
        self.o = o; self.L = []; self.sn = 0
    def e(self, s): self.L.append(s)
    def stamp(self, real=False):
        i = self.sn; self.sn += 1
        if self.o.stamps:
            self.e(f"  {'s_memrealtime' if real else 's_memtime'} s[{56+2*i}:{57+2*i}]")
    def dump(self, n):
        e = self.e
        e("  s_waitcnt lgkmcnt(0) vmcnt(0)")
        e("  s_mul_i32 s44, s2, 5")
        e("  s_add_u32 s44, s44, s38")
        e("  s_lshl_b32 s44, s44, 7")
        e("  v_mov_b32 v1, s44")
        for i in range(32):
            e(f"  v_mov_b32 v{20+i}, " + (f"s{56+2*i}" if i < n else "0"))
        e("  s_mov_b64 exec, 1")
        for i in range(8):
            e(f"  global_store_dwordx4 v1, v[{20+4*i}:{23+4*i}], s[54:55] offset:{16*i}")

def add_phase(e, reg):
    e(f"  s_and_b32 {reg}, {reg}, 15")
    e(f"  s_mul_i32 {reg}, {reg}, 0x01010101")
    for r in ("s30", "s31"):
        e(f"  s_and_b32 s46, {r}, 0x0f0f0f0f")
        e(f"  s_add_u32 s46, s46, {reg}")
        e(f"  s_and_b32 s46, s46, 0x0f0f0f0f")
        e(f"  s_lshr_b32 s47, {r}, 4")
        e(f"  s_and_b32 s47, s47, 0x0f0f0f0f")
        e(f"  s_add_u32 s47, s47, {reg}")
        e(f"  s_and_b32 s47, s47, 0x0f0f0f0f")
        e(f"  s_lshl4_add_u32 {r}, s47, s46")

def gen(o):
    g = G(o); e = g.e
    PAR = 131072
    lds = PAR + 512
    e(HEADER.rstrip())
    e(f"; @launch grid=(256,1,1) block=(320,1,1) lds={lds}")
    e('.amdgcn_target "amdgcn-amd-amdhsa--gfx950"')
    e(".text")
    if o.align:
        e(".p2align 12")
        npad = (13 + o.koff) % 16 if o.rawpad < 0 else o.rawpad
        if npad: e(f".fill {npad * 64}, 4, 0xbf800000")
    e(f".globl {NAME}"); e(".p2align 8"); e(f".type {NAME},@function"); e(f"{NAME}:")
    g.stamp()
    e("  s_load_dwordx16 s[4:19], s[0:1], 0")
    g.stamp(real=True)
    if o.xprobe: e("  s_memrealtime s[90:91]")
    e("  s_cmp_ge_u32 s2, 256")
    e("  s_cbranch_scc1 L_end")
    if o.stamps: e("  s_load_dwordx2 s[54:55], s[0:1], 64")
    e("  v_lshrrev_b32 v2, 6, v0")
    e("  s_getpc_b64 s[48:49]")
    e("L_pc:")
    e("  v_readfirstlane_b32 s38, v2")
    e("  s_bfe_u32 s28, s2, 0x20006")
    e("  s_bfe_u32 s29, s2, 0x30003")
    e("  s_bfe_u32 s32, s2, 0x20001")
    e("  s_and_b32 s33, s2, 1")
    e("  s_lshl2_add_u32 s34, s32, s28")
    e("  s_lshl3_add_u32 s35, s33, s29")
    e("  s_cmp_eq_u32 s38, 0")
    e("  s_cbranch_scc1 L_loader")
    if o.pf:
        e("  v_lshlrev_b32 v1, 6, v0")
        e(f"  v_subrev_u32 v1, {4096-640}, v1")
        e(f"  v_min_u32 v1, L_end-L_pc, v1")
        e("  global_load_dword v40, v1, s[48:49]")
    e("  s_branch L_cons")
    e("L_loader:")
    p = o.sched.split("_"); k = p[0]; arg = [int(x) for x in p[1:]] if k != "tab" else []
    if k == "tab":
        e("  s_lshl_b32 s40, s2, 3")
        e("  s_add_u32 s40, s40, L_tab-L_pc")
        e("  s_load_dwordx2 s[30:31], s[48:49], s40")
    e("  v_lshrrev_b32 v3, 3, v0")
    e("  v_lshlrev_b32 v3, 11, v3")
    e("  v_and_b32 v5, 7, v0")
    e("  v_lshrrev_b32 v6, 4, v0")
    e("  v_xor_b32 v7, v5, v6")
    e("  s_lshl_b32 s36, s34, 17")
    e("  v_lshl_add_u32 v10, v7, 4, v3")
    e("  v_add_u32 v10, s36, v10")
    e("  v_xor_b32 v11, 64, v10")
    e("  v_add_u32 v11, 15360, v11")
    e("  v_add_u32 v12, 30720, v10")
    e("  v_add_u32 v13, 30720, v11")
    for q in range(4): e(f"  v_add_u32 v{14+q}, 65536, v{10+q}")
    e("  v_lshlrev_b32 v6, 2, v6")
    e("  v_and_b32 v6, 4, v6")
    e("  v_xor_b32 v7, v5, v6")
    e("  s_lshl_b32 s37, s35, 7")
    e("  v_lshl_add_u32 v9, v0, 1, s37")
    e("  s_bitset1_b32 s37, 21")
    e("  v_lshl_add_u32 v18, v7, 4, v3")
    e("  v_add_u32 v18, s37, v18")
    for q in range(1, 8): e(f"  v_add_u32 v{18+q}, {16384*q-1024*(q%4)}, v18")
    e("  s_mov_b32 s22, 0x200000")
    e("  s_mov_b32 s23, 0x20000")
    e("  s_mov_b32 s26, 0x400000")
    e("  s_mov_b32 s27, 0x20000")
    if k != "tab":
        e("  s_mov_b32 s30, 0x76543210")
        e("  s_mov_b32 s31, 0xfedcba98")
    if k in ("rot0", "tab"):
        pass
    elif k == "rot1":
        e("  s_lshl1_add_u32 s39, s28, s29")
        e("  s_and_b32 s40, s32, 1")
        e("  s_add_u32 s39, s39, s40")
        e("  s_lshl_b32 s39, s39, 1")
        add_phase(e, "s39")
    elif k == "jit":
        e("  s_add_u32 s40, s34, s35")
        e("  s_and_b32 s40, s40, 15")
        e("  s_lshl_b32 s40, s40, 2")
        e(f"  s_sub_i32 s41, s40, {4*arg[0]}")
        e("  s_max_i32 s41, s41, 0")
        move_nibbles(e, "s40", "s41", 1)
    elif k == "duty2":
        e("  s_add_u32 s40, s28, s29")
        e("  s_and_b32 s40, s40, 3")
        e("  s_lshl_b32 s42, s40, 3")
        e(f"  s_sub_i32 s41, s42, {4*arg[0]}")
        e("  s_max_i32 s41, s41, 0")
        move_nibbles(e, "s42", "s41", 2)
        e("  s_add_u32 s42, s42, 32")
        e(f"  s_sub_i32 s41, s42, {4*arg[0]}")
        move_nibbles(e, "s42", "s41", 2)
        e("  s_lshl1_add_u32 s39, s33, s32")
        e("  s_lshl_b32 s39, s39, 2")
        add_phase(e, "s39")
    else:
        raise SystemExit("sched")
    def decode(n):
        r = "s30" if n < 8 else "s31"
        a, b = ("s42", "s43") if n % 2 == 0 else ("s40", "s41")
        return [f"  s_bfe_u32 {a}, {r}, {0x40000 + 4*(n%8)}", f"  s_lshl_b32 {b}, {a}, 17", f"  s_lshl_b32 {a}, {a}, 7"]
    e("  s_mov_b32 m0, 0")
    if k != "tab":
        for s in decode(0): e(s)
    e("  s_waitcnt lgkmcnt(0)")
    if k == "tab":
        for s in decode(0): e(s)
    e("  s_mov_b64 s[20:21], s[4:5]")
    g.stamp()
    AH = o.ahead
    npar = 4
    for n in range(16):
        a, b = ("s42", "s43") if n % 2 == 0 else ("s40", "s41")
        base = (n % 8) * 16384
        ld = []
        for q in range(8): ld.append(f"  buffer_load_dwordx4 v{10+q}, s[20:23], {a} offen offset:{1024*(q%4)} lds")
        for q in range(8): ld.append(f"  buffer_load_dwordx4 v{18+q}, s[24:27], {b} offen offset:{1024*(q%4)} lds")
        nxt = decode(n + 1) if n < 15 else ["  s_nop 0"] * 3
        for q in range(16):
            if q == AH and n >= 3:
                if n == 3 and o.parpos >= 0:
                    e(f"  s_waitcnt vmcnt({32 + AH + 16 - o.parpos})")
                    for s in PARAM: e(s)
                    e(f"  v_lshlrev_b32 v9, 3, v0")
                    e(f"  v_add_u32 v9, {PAR}, v9")
                    e("  ds_write_b64 v9, v[30:31]")
                    e(f"  s_waitcnt vmcnt({32+AH}) lgkmcnt(0)")
                else:
                    e(f"  s_waitcnt vmcnt({32+AH})")
                e("  s_barrier")
                g.stamp()
            if n == 0 and q == o.parpos:
                for i in range(4): e(f"  global_load_ushort v{26+i}, v9, s[{8+2*i}:{9+2*i}]")
            e(ld[q])
            if n == 0 and q == 0: e("  s_mov_b64 s[24:25], s[6:7]")
            if q % 4 == 3:
                nb = base + 4096 * (q // 4 + 1) if q < 15 else ((n + 1) % 8) * 16384
                if not (n == 15 and q == 15):
                    e(f"  s_mov_b32 m0, {nb}")
                    e(nxt[q // 4] if q < 15 else "  s_nop 0")
    for n in (32, 16, 0):
        e(f"  s_waitcnt vmcnt({n})")
        e("  s_barrier")
        g.stamp()
    if o.stamps: g.dump(g.sn)
    e("  s_endpgm")
    g.sn = 2
    if o.align and o.coff >= 0:
        e(".p2align 12")
        if o.coff: e(f".fill {o.coff}, 4, 0xbf800000")
    e("L_cons:")
    e("  s_sub_u32 s40, s38, 1")
    e("  s_lshr_b32 s41, s40, 1")
    e("  s_and_b32 s42, s40, 1")
    e("  v_and_b32 v8, 31, v0")
    e("  v_bfe_u32 v16, v0, 5, 1")
    e("  v_bfe_u32 v15, v0, 1, 3")
    e("  v_xor_b32 v15, v15, v16")
    e("  v_lshlrev_b32 v15, 4, v15")
    e("  v_lshl_add_u32 v14, v8, 7, v15")
    e("  s_lshl_b32 s44, s42, 12")
    e("  v_add_u32 v24, s44, v14")
    e("  v_xor_b32 v25, 32, v24")
    e("  v_xor_b32 v26, 64, v24")
    e("  v_xor_b32 v27, 0x60, v24")
    e("  v_bfe_u32 v15, v0, 2, 2")
    e("  v_lshlrev_b32 v14, 7, v15")
    e("  v_lshl_add_u32 v14, v16, 10, v14")
    e("  v_lshrrev_b32 v15, 1, v15")
    e("  v_xor_b32 v15, s41, v15")
    e("  v_lshl_add_u32 v14, v15, 6, v14")
    e("  v_bfe_u32 v15, v0, 4, 1")
    e("  v_lshl_add_u32 v14, v15, 5, v14")
    e("  v_and_b32 v15, 3, v0")
    e("  v_lshl_add_u32 v14, v15, 3, v14")
    e("  v_add_u32 v28, 8192, v14")
    for i in range(5):
        e(f"  v_add_u32 v{29+i}, 65536, v{24+i}")
    e("  s_lshl1_add_u32 s44, s34, s42")
    e("  s_lshl_b32 s44, s44, 16")
    e("  s_lshl1_add_u32 s45, s35, s41")
    e("  s_lshl_b32 s45, s45, 6")
    e("  s_add_u32 s44, s44, s45")
    e("  s_add_u32 s44, s44, 4096")
    e("  v_lshlrev_b32 v17, 13, v16")
    e("  v_lshl_add_u32 v17, v8, 1, v17")
    e("  v_add_u32 v17, s44, v17")
    e("  s_lshl_b32 s44, s41, 8")
    e(f"  s_add_u32 s44, s44, {PAR}")
    e("  v_lshl_add_u32 v21, v8, 3, s44")
    e("  s_mov_b32 s46, 0xbfb8aa3b")
    e("  s_mov_b32 s47, 0xbfb8aa3b")
    e("  s_waitcnt lgkmcnt(0)")
    ACC = 112
    FR = [48, 80]
    def reads(c, ks):
        if o.x_noread and c > 1: return
        slot = c % 8; b = slot // 4; off = (slot % 4) * 16384; f = FR[c & 1]
        e(f"  ds_read_b128 v[{f+4*ks}:{f+4*ks+3}], v{24+5*b+ks} offset:{off}")
        e(f"  ds_read_b64_tr_b16 v[{f+16+4*ks}:{f+16+4*ks+1}], v{28+5*b} offset:{off+2048*ks}")
        e(f"  ds_read_b64_tr_b16 v[{f+16+4*ks+2}:{f+16+4*ks+3}], v{28+5*b} offset:{off+2048*ks+512}")
    def mfma(c, ks):
        f = FR[c & 1]
        if o.x_mfma == "none": return
        if o.x_mfma == "16":
            for h in range(2):
                t = ACC + 4 * ((2 * ks + h) % 4)
                e(f"  v_mfma_f32_16x16x32_bf16 v[{t}:{t+3}], v[{f+4*ks}:{f+4*ks+3}], v[{f+16+4*ks}:{f+16+4*ks+3}], v[{t}:{t+3}]")
            return
        if o.x_mfma == "half" and ks % 2: return
        src = "0" if (c == 0 and ks == 0) else f"v[{ACC}:{ACC+15}]"
        e(f"  v_mfma_f32_32x32x16_bf16 v[{ACC}:{ACC+15}], v[{f+4*ks}:{f+4*ks+3}], v[{f+16+4*ks}:{f+16+4*ks+3}], {src}")
    for c in range(16):
        e("  s_barrier")
        if c == 0: e("  ds_read_b64 v[22:23], v21")
        for ks in range(4):
            reads(c, ks)
            if 1 <= c <= 14:
                e(f"  s_waitcnt lgkmcnt(12)")
                mfma(c - 1, ks)
        if c >= 14:
            for ks in range(4):
                e(f"  s_waitcnt lgkmcnt({9-3*ks})")
                mfma(c, ks)
    g.stamp()
    for a in range(1, 4): e(f"  v_add_u32 v{17+a}, {16384*a}, v17")
    if o.vnop:
        for i in range(9): e("  v_mov_b32 v2, v3")
    else:
        e("  s_nop 8")
    U, E, O = 48, 64, 80
    pol = o.stpol.replace('_', ' ')
    def st1(p): return [f"  v_pk_fma_f32 v[{U+2*p}:{U+2*p+1}], v[{ACC+2*p}:{ACC+2*p+1}], v[22:23], v[22:23] op_sel:[0,0,1] op_sel_hi:[1,0,1]"]
    def st2(p): return [f"  v_exp_f32 v{E+2*p}, v{U+2*p}", f"  v_exp_f32 v{E+2*p+1}, v{U+2*p+1}"]
    def st3(p): return [f"  v_pk_fma_f32 v[{E+2*p}:{E+2*p+1}], v[{E+2*p}:{E+2*p+1}], s[46:47], s[46:47]"]
    def st4(p): return [f"  v_rcp_f32 v{E+2*p}, v{E+2*p}", f"  v_rcp_f32 v{E+2*p+1}, v{E+2*p+1}"]
    def st5(p): return [f"  v_pk_mul_f32 v[{U+2*p}:{U+2*p+1}], v[{U+2*p}:{U+2*p+1}], v[{E+2*p}:{E+2*p+1}]"]
    def st6(p): return [f"  v_cvt_pk_bf16_f32 v{O+p}, v{U+2*p}, v{U+2*p+1}"]
    def st7(p):
        if o.nostore: return []
        off = -4096 + 4096 * (p % 2)
        return [f"  global_store_short v{17+p//2}, v{O+p}, s[16:17] offset:{off} {pol}",
                f"  global_store_short_d16_hi v{17+p//2}, v{O+p}, s[16:17] offset:{off+2048} {pol}"]
    B = o.eb
    for p0 in range(0, 8, B):
        R = range(p0, p0 + B)
        for st in (st1, st2, st3, st4, st5, st6, st7):
            for p in R:
                for s in st(p): e(s)
    g.stamp()
    if o.stamps:
        e("  s_waitcnt vmcnt(0)")
        g.stamp()
        g.stamp(real=True)
        g.dump(g.sn)
    if o.xprobe:
        import probe
        probe.emit(e, o.xprobe)
    e("L_end:")
    e("  s_endpgm")
    if k == "tab":
        import mb7
        e(".p2align 6")
        e(".type L_tab,@object")
        e("L_tab:")
        for wg in range(256):
            order = [c for t, c in mb7.schedule(o.sched[4:], wg) if t == "a"]
            v = sum(c << (4 * i) for i, c in enumerate(order))
            e(f"  .long {hex(v & 0xffffffff)}, {hex(v >> 32)}")
        e(".size L_tab, 2048")
    e('.section .rodata,"a"')
    e(".p2align 6")
    e(f".amdhsa_kernel {NAME}")
    e("  .amdhsa_next_free_vgpr 128")
    e("  .amdhsa_next_free_sgpr 102")
    e("  .amdhsa_accum_offset 128")
    e("  .amdhsa_group_segment_fixed_size 0")
    e("  .amdhsa_kernarg_size 72")
    e("  .amdhsa_user_sgpr_count 2")
    e("  .amdhsa_user_sgpr_kernarg_segment_ptr 1")
    e("  .amdhsa_system_sgpr_workgroup_id_x 1")
    e("  .amdhsa_float_denorm_mode_32 3")
    e(".end_amdhsa_kernel")
    return "\n".join(g.L) + "\n"

PARAM = [
    "  v_lshlrev_b32 v27, 16, v27",
    "  v_add_f32 v27, 0x3727c5ac, v27",
    "  v_cvt_pk_bf16_f32 v27, v27, v27",
    "  v_lshlrev_b32 v27, 16, v27",
    "  v_sqrt_f32 v27, v27",
    "  v_lshlrev_b32 v26, 16, v26",
    "  v_cvt_pk_bf16_f32 v27, v27, v27",
    "  v_lshlrev_b32 v27, 16, v27",
    "  v_rcp_f32 v27, v27",
    "  v_lshlrev_b32 v28, 16, v28",
    "  v_cvt_pk_bf16_f32 v27, v27, v27",
    "  v_lshlrev_b32 v27, 16, v27",
    "  v_mul_f32 v27, v27, v28",
    "  v_cvt_pk_bf16_f32 v27, v27, v27",
    "  v_lshlrev_b32 v27, 16, v27",
    "  v_lshlrev_b32 v29, 16, v29",
    "  v_fma_f32 v29, -v26, v27, v29",
    "  v_mul_f32 v30, 0xbfb8aa3b, v27",
    "  v_mul_f32 v31, 0xbfb8aa3b, v29",
]

def parse(argv):
    ap = argparse.ArgumentParser()
    ap.add_argument("-o", default="-")
    ap.add_argument("--sched", default="duty2_6")
    ap.add_argument("--stamps", type=int, default=0)
    ap.add_argument("--pf", type=int, default=1)
    ap.add_argument("--stpol", default="")
    ap.add_argument("--ahead", type=int, default=2)
    ap.add_argument("--parpos", type=int, default=0)
    ap.add_argument("--eb", type=int, default=2)
    ap.add_argument("--vnop", type=int, default=1)
    ap.add_argument("--nostore", type=int, default=0)
    ap.add_argument("--align", type=int, default=1)
    ap.add_argument("--koff", type=int, default=0)
    ap.add_argument("--xprobe", default="")
    ap.add_argument("--rawpad", type=int, default=-1)
    ap.add_argument("--coff", type=int, default=0)
    ap.add_argument("--x_mfma", default="32")
    ap.add_argument("--x_noread", type=int, default=0)
    return ap.parse_args(argv)

if __name__ == "__main__":
    o = parse(sys.argv[1:])
    s = gen(o)
    if o.o == "-": sys.stdout.write(s)
    else: open(o.o, "w").write(s)
```

```python
import sys, argparse
from gen2 import HEADER, NAME, move_nibbles

class G:
    def __init__(self, o):
        self.o = o; self.L = []; self.sn = 0
    def e(self, s): self.L.append(s)
    def stamp(self, real=False):
        i = self.sn; self.sn += 1
        if self.o.stamps:
            self.e(f"  {'s_memrealtime' if real else 's_memtime'} s[{56+2*i}:{57+2*i}]")
    def dump(self, n):
        e = self.e
        e("  s_waitcnt lgkmcnt(0) vmcnt(0)")
        e("  s_sleep 64")
        e("  s_mul_i32 s44, s2, 5")
        e("  s_add_u32 s44, s44, s38")
        e("  s_lshl_b32 s44, s44, 7")
        e("  v_mov_b32 v1, s44")
        for i in range(32):
            e(f"  v_mov_b32 v{20+i}, " + (f"s{56+2*i}" if i < n else "0"))
        e("  s_mov_b64 exec, 1")
        for i in range(8):
            e(f"  global_store_dwordx4 v1, v[{20+4*i}:{23+4*i}], s[54:55] offset:{16*i}")

def add_phase(e, reg):
    e(f"  s_and_b32 {reg}, {reg}, 15")
    e(f"  s_mul_i32 {reg}, {reg}, 0x01010101")
    for r in ("s30", "s31"):
        e(f"  s_and_b32 s46, {r}, 0x0f0f0f0f")
        e(f"  s_add_u32 s46, s46, {reg}")
        e(f"  s_and_b32 s46, s46, 0x0f0f0f0f")
        e(f"  s_lshr_b32 s47, {r}, 4")
        e(f"  s_and_b32 s47, s47, 0x0f0f0f0f")
        e(f"  s_add_u32 s47, s47, {reg}")
        e(f"  s_and_b32 s47, s47, 0x0f0f0f0f")
        e(f"  s_lshl4_add_u32 {r}, s47, s46")

def gen(o):
    g = G(o); e = g.e
    PAR = 131072
    lds = PAR + 512
    e(HEADER.rstrip())
    e(f"; @launch grid=(256,1,1) block=(320,1,1) lds={lds}")
    e('.amdgcn_target "amdgcn-amd-amdhsa--gfx950"')
    e(".text")
    if o.align:
        e(".p2align 12")
        npad = (13 + o.koff) % 16 if o.rawpad < 0 else o.rawpad
        if npad: e(f".fill {npad * 64}, 4, 0xbf800000")
    e(f".globl {NAME}"); e(".p2align 8"); e(f".type {NAME},@function"); e(f"{NAME}:")
    g.stamp()
    e("  s_load_dwordx16 s[4:19], s[0:1], 0")
    g.stamp(real=True)
    if o.xprobe: e("  s_memrealtime s[90:91]")
    e("  s_cmp_ge_u32 s2, 256")
    e("  s_cbranch_scc1 L_end")
    if o.stamps: e("  s_load_dwordx2 s[54:55], s[0:1], 64")
    e("  v_lshrrev_b32 v2, 6, v0")
    e("  s_getpc_b64 s[48:49]")
    e("L_pc:")
    e("  v_readfirstlane_b32 s38, v2")
    e("  s_bfe_u32 s28, s2, 0x20006")
    e("  s_bfe_u32 s29, s2, 0x30003")
    e("  s_bfe_u32 s32, s2, 0x20001")
    e("  s_and_b32 s33, s2, 1")
    e("  s_lshl2_add_u32 s34, s32, s28")
    e("  s_lshl3_add_u32 s35, s33, s29")
    e("  s_cmp_eq_u32 s38, 0")
    e("  s_cbranch_scc1 L_loader")
    if o.pf:
        e("  v_lshlrev_b32 v1, 6, v0")
        e(f"  v_subrev_u32 v1, {4096-640}, v1")
        e(f"  v_min_u32 v1, L_end-L_pc, v1")
        e("  global_load_dword v40, v1, s[48:49]")
    e("  s_branch L_cons")
    e("L_loader:")
    p = o.sched.split("_"); k = p[0]; arg = [int(x) for x in p[1:]] if k not in ("tab", "buf") else []
    if k == "buf":
        e("  s_lshl_b32 s40, s2, 7")
        e("  s_waitcnt lgkmcnt(0)")
        e("  s_load_dwordx2 s[30:31], s[18:19], s40")
        e("  s_add_u32 s40, s40, 64")
        e("  s_load_dwordx16 s[64:79], s[18:19], s40")
        e("  v_lshrrev_b32 v33, 1, v0")
        e("  v_lshlrev_b32 v33, 11, v33")
        e("  v_and_b32 v34, 1, v0")
        e("  v_lshl_add_u32 v33, v34, 6, v33")
        e("  v_lshlrev_b32 v35, 11, v0")
    if k == "tab":
        e("  s_lshl_b32 s40, s2, 3")
        e("  s_add_u32 s40, s40, L_tab-L_pc")
        e("  s_load_dwordx2 s[30:31], s[48:49], s40")
    e("  v_lshrrev_b32 v3, 3, v0")
    e("  v_lshlrev_b32 v3, 11, v3")
    e("  v_and_b32 v5, 7, v0")
    e("  v_lshrrev_b32 v6, 4, v0")
    e("  v_xor_b32 v7, v5, v6")
    e("  s_lshl_b32 s36, s34, 17")
    e("  v_lshl_add_u32 v10, v7, 4, v3")
    e("  v_add_u32 v10, s36, v10")
    e("  v_xor_b32 v11, 64, v10")
    e("  v_add_u32 v11, 15360, v11")
    e("  v_add_u32 v12, 30720, v10")
    e("  v_add_u32 v13, 30720, v11")
    for q in range(4): e(f"  v_add_u32 v{14+q}, 65536, v{10+q}")
    e("  v_lshlrev_b32 v6, 2, v6")
    e("  v_and_b32 v6, 4, v6")
    e("  v_xor_b32 v7, v5, v6")
    e("  s_lshl_b32 s37, s35, 7")
    e("  v_lshl_add_u32 v9, v0, 1, s37")
    e("  s_bitset1_b32 s37, 21")
    e("  v_lshl_add_u32 v18, v7, 4, v3")
    e("  v_add_u32 v18, s37, v18")
    for q in range(1, 8): e(f"  v_add_u32 v{18+q}, {16384*q-1024*(q%4)}, v18")
    e("  s_mov_b32 s22, 0x200000")
    e("  s_mov_b32 s23, 0x20000")
    e("  s_mov_b32 s26, 0x400000")
    e("  s_mov_b32 s27, 0x20000")
    if k == "buf":
        e("  s_mov_b32 s86, 0x400000")
        e("  s_mov_b32 s87, 0x20000")
    if k not in ("tab", "buf"):
        e("  s_mov_b32 s30, 0x76543210")
        e("  s_mov_b32 s31, 0xfedcba98")
    if k in ("rot0", "tab", "buf"):
        pass
    elif k == "rot1":
        e("  s_lshl1_add_u32 s39, s28, s29")
        e("  s_and_b32 s40, s32, 1")
        e("  s_add_u32 s39, s39, s40")
        e("  s_lshl_b32 s39, s39, 1")
        add_phase(e, "s39")
    elif k == "jit":
        e("  s_add_u32 s40, s34, s35")
        e("  s_and_b32 s40, s40, 15")
        e("  s_lshl_b32 s40, s40, 2")
        e(f"  s_sub_i32 s41, s40, {4*arg[0]}")
        e("  s_max_i32 s41, s41, 0")
        move_nibbles(e, "s40", "s41", 1)
    elif k == "jit14":
        e("  s_mul_i32 s40, s33, 7")
        e("  s_add_u32 s40, s40, s29")
        e("  s_cmp_gt_u32 s29, 3")
        e("  s_subb_u32 s40, s40, 0")
        e("  s_add_u32 s40, s40, s34")
        e("  s_cmp_ge_u32 s40, 14")
        e("  s_cselect_b32 s41, 14, 0")
        e("  s_sub_u32 s40, s40, s41")
        e("  s_cmp_ge_u32 s40, 14")
        e("  s_cselect_b32 s41, 12, -2")
        e("  s_sub_u32 s40, s40, s41")
        e("  s_cmp_eq_u32 s29, 3")
        e("  s_cselect_b32 s40, 0, s40")
        e("  s_lshl_b32 s40, s40, 2")
        e(f"  s_sub_i32 s41, s40, {4*arg[0]}")
        e(f"  s_max_i32 s41, s41, {4*arg[1] if len(arg) > 1 else 0}")
        e("  s_min_i32 s41, s41, s40")
        move_nibbles(e, "s40", "s41", 1)
    elif k == "jl":
        e("  s_cmp_gt_u32 s29, 3")
        e("  s_subb_u32 s40, s29, 0")
        e("  s_lshl1_add_u32 s40, s40, s33")
        e("  s_add_u32 s40, s40, s34")
        e("  s_cmp_ge_u32 s40, 14")
        e("  s_cselect_b32 s41, 14, 0")
        e("  s_sub_u32 s40, s40, s41")
        e("  s_cmp_ge_u32 s40, 14")
        e("  s_cselect_b32 s41, 12, -2")
        e("  s_sub_u32 s40, s40, s41")
        e("  s_cmp_eq_u32 s29, 3")
        e("  s_cselect_b32 s40, 0, s40")
        e("  s_lshl_b32 s40, s40, 2")
        e(f"  s_sub_i32 s41, s40, {4*arg[0]}")
        e(f"  s_max_i32 s41, s41, {4*arg[1] if len(arg) > 1 else 0}")
        e("  s_min_i32 s41, s41, s40")
        move_nibbles(e, "s40", "s41", 1)
        e("  s_cmp_eq_u32 s29, 3")
        e("  s_cselect_b32 s39, -1, s41")
        e("  s_lshr_b32 s44, s28, 1")
        e("  s_lshl_b32 s44, s44, 16")
        e("  s_lshl_b32 s45, s33, 10")
        e("  s_add_u32 s44, s44, s45")
        e("  s_add_u32 s44, s44, 0x200180")
        e("  v_lshrrev_b32 v33, 1, v0")
        e("  v_lshlrev_b32 v33, 11, v33")
        e("  v_and_b32 v34, 1, v0")
        e("  v_lshl_add_u32 v33, v34, 6, v33")
        e("  v_add_u32 v33, s44, v33")
    elif k == "duty2":
        e("  s_add_u32 s40, s28, s29")
        e("  s_and_b32 s40, s40, 3")
        e("  s_lshl_b32 s42, s40, 3")
        e(f"  s_sub_i32 s41, s42, {4*arg[0]}")
        e("  s_max_i32 s41, s41, 0")
        move_nibbles(e, "s42", "s41", 2)
        e("  s_add_u32 s42, s42, 32")
        e(f"  s_sub_i32 s41, s42, {4*arg[0]}")
        move_nibbles(e, "s42", "s41", 2)
        e("  s_lshl1_add_u32 s39, s33, s32")
        e("  s_lshl_b32 s39, s39, 2")
        add_phase(e, "s39")
    else:
        raise SystemExit("sched")
    def decode(n):
        r = "s30" if n < 8 else "s31"
        a, b = ("s42", "s43") if n % 2 == 0 else ("s40", "s41")
        return [f"  s_bfe_u32 {a}, {r}, {0x40000 + 4*(n%8)}", f"  s_lshl_b32 {b}, {a}, 17", f"  s_lshl_b32 {a}, {a}, 7"]
    e("  s_mov_b32 m0, 0")
    if k not in ("tab", "buf"):
        for s in decode(0): e(s)
    e("  s_waitcnt lgkmcnt(0)")
    if k in ("tab", "buf"):
        for s in decode(0): e(s)
    if o.lite: e("  s_memrealtime s[80:81]")
    e("  s_mov_b64 s[20:21], s[4:5]")
    g.stamp()
    AH = o.ahead
    npar = 4
    for n in range(16):
        a, b = ("s42", "s43") if n % 2 == 0 else ("s40", "s41")
        base = (n % 8) * 16384
        ld = []
        for q in range(8): ld.append(f"  buffer_load_dwordx4 v{10+q}, s[20:23], {a} offen offset:{1024*(q%4)} lds")
        for q in range(8): ld.append(f"  buffer_load_dwordx4 v{18+q}, s[24:27], {b} offen offset:{1024*(q%4)} lds")
        nxt = decode(n + 1) if n < 15 else ["  s_nop 0"] * 3
        for q in range(16):
            if q == AH and n >= 3:
                if n == 3 and o.parpos >= 0:
                    e(f"  s_waitcnt vmcnt({32 + AH + 16 - o.parpos})")
                    for s in PARAM: e(s)
                    e(f"  v_lshlrev_b32 v9, 3, v0")
                    e(f"  v_add_u32 v9, {PAR}, v9")
                    e("  ds_write_b64 v9, v[30:31]")
                    e(f"  s_waitcnt vmcnt({32+AH}) lgkmcnt(0)")
                else:
                    e(f"  s_waitcnt vmcnt({32+AH})")
                e("  s_barrier")
                g.stamp()
            if n == 0 and q == o.parpos:
                if o.outtlb: e("  global_load_ushort v32, v9, s[16:17]")
                for i in range(4): e(f"  global_load_ushort v{26+i}, v9, s[{8+2*i}:{9+2*i}]")
            e(ld[q])
            if k == "buf" and q == o.touch:
                e(f"  s_cmp_eq_u32 s{64+n}, -1")
                e(f"  s_cbranch_scc1 L_nt{n}")
                e(f"  s_bitcmp1_b32 s{64+n}, 21")
                e(f"  s_cselect_b64 s[84:85], s[6:7], s[4:5]")
                e(f"  s_bitcmp1_b32 s{64+n}, 0")
                e(f"  s_cbranch_scc1 L_t64{n}")
                e(f"  buffer_load_dword v34, v33, s[84:87], s{64+n} offen")
                e(f"  s_branch L_nt{n}")
                e(f"L_t64{n}:")
                e(f"  s_bitset0_b32 s{64+n}, 0")
                e(f"  buffer_load_dword v34, v35, s[84:87], s{64+n} offen")
                e(f"L_nt{n}:")
            if k == "jl" and o.touch >= 0 and q == o.touch and n <= 15 - arg[0]:
                e(f"  s_cmp_lg_u32 s39, {4*n}")
                e(f"  s_cbranch_scc1 L_nt{n}")
                e(f"  buffer_load_dword v34, v33, s[24:27], {b} offen")
                e(f"L_nt{n}:")
            if n == 0 and q == 0: e("  s_mov_b64 s[24:25], s[6:7]")
            if q % 4 == 3:
                nb = base + 4096 * (q // 4 + 1) if q < 15 else ((n + 1) % 8) * 16384
                if not (n == 15 and q == 15):
                    e(f"  s_mov_b32 m0, {nb}")
                    e(nxt[q // 4] if q < 15 else "  s_nop 0")
    for n in (32, 16, 0):
        e(f"  s_waitcnt vmcnt({n})")
        e("  s_barrier")
        g.stamp()
    if o.stamps: g.dump(g.sn)
    if o.lite:
        e("  s_memrealtime s[82:83]")
        e("  s_load_dwordx2 s[54:55], s[0:1], 64")
        e("  s_waitcnt lgkmcnt(0)")
        e("  s_lshl_b32 s44, s2, 3")
        e("  v_mov_b32 v1, s44")
        e("  v_mov_b32 v2, s80")
        e("  v_mov_b32 v3, s82")
        e("  s_mov_b64 exec, 1")
        e("  global_store_dwordx2 v1, v[2:3], s[54:55]")
    e("  s_endpgm")
    g.sn = 2
    if o.align and o.coff >= 0:
        e(".p2align 12")
        if o.coff: e(f".fill {o.coff}, 4, 0xbf800000")
    e("L_cons:")
    e("  s_sub_u32 s40, s38, 1")
    e("  s_lshr_b32 s41, s40, 1")
    e("  s_and_b32 s42, s40, 1")
    e("  v_and_b32 v8, 31, v0")
    e("  v_bfe_u32 v16, v0, 5, 1")
    e("  v_bfe_u32 v15, v0, 1, 3")
    e("  v_xor_b32 v15, v15, v16")
    e("  v_lshlrev_b32 v15, 4, v15")
    e("  v_lshl_add_u32 v14, v8, 7, v15")
    e("  s_lshl_b32 s44, s42, 12")
    e("  v_add_u32 v24, s44, v14")
    e("  v_xor_b32 v25, 32, v24")
    e("  v_xor_b32 v26, 64, v24")
    e("  v_xor_b32 v27, 0x60, v24")
    e("  v_bfe_u32 v15, v0, 2, 2")
    e("  v_lshlrev_b32 v14, 7, v15")
    e("  v_lshl_add_u32 v14, v16, 10, v14")
    e("  v_lshrrev_b32 v15, 1, v15")
    e("  v_xor_b32 v15, s41, v15")
    e("  v_lshl_add_u32 v14, v15, 6, v14")
    e("  v_bfe_u32 v15, v0, 4, 1")
    e("  v_lshl_add_u32 v14, v15, 5, v14")
    e("  v_and_b32 v15, 3, v0")
    e("  v_lshl_add_u32 v14, v15, 3, v14")
    e("  v_add_u32 v28, 8192, v14")
    for i in range(5):
        e(f"  v_add_u32 v{29+i}, 65536, v{24+i}")
    e("  s_lshl1_add_u32 s44, s34, s42")
    e("  s_lshl_b32 s44, s44, 16")
    e("  s_lshl1_add_u32 s45, s35, s41")
    e("  s_lshl_b32 s45, s45, 6")
    e("  s_add_u32 s44, s44, s45")
    e("  s_add_u32 s44, s44, 4096")
    e("  v_lshlrev_b32 v17, 13, v16")
    e("  v_lshl_add_u32 v17, v8, 1, v17")
    e("  v_add_u32 v17, s44, v17")
    e("  s_lshl_b32 s44, s41, 8")
    e(f"  s_add_u32 s44, s44, {PAR}")
    e("  v_lshl_add_u32 v21, v8, 3, s44")
    e("  s_mov_b32 s46, 0xbfb8aa3b")
    e("  s_mov_b32 s47, 0xbfb8aa3b")
    if o.spf:
        e("  s_lshr_b32 s50, s2, 3")
        e("  s_lshl2_add_u32 s50, s50, s40")
        e("  s_lshr_b32 s51, s50, 1")
        e("  s_lshl_b32 s51, s51, 11")
        e("  s_and_b32 s50, s50, 1")
        e("  s_lshl_b32 s50, s50, 6")
        e("  s_add_u32 s50, s50, s51")
        e("  s_lshl_b32 s51, s33, 10")
        e("  s_add_u32 s50, s50, s51")
        e("  s_add_u32 s50, s50, 0x300180")
    e("  s_waitcnt lgkmcnt(0)")
    if o.spf:
        e("  s_add_u32 s50, s50, s6")
        e("  s_addc_u32 s51, s7, 0")
        for d in range(o.spfdelay): e("  s_sleep 2")
        for c in range(2, 16):
            e(f"  s_load_dword s52, s[50:51], {(c-8)*131072}")
        g.stamp()
        e("  s_waitcnt lgkmcnt(0)")
        g.stamp()
        if o.stamps: e("  s_waitcnt lgkmcnt(0)")
    ACC = 112
    FR = [48, 80]
    def reads(c, ks):
        if o.x_noread and c > 1: return
        slot = c % 8; b = slot // 4; off = (slot % 4) * 16384; f = FR[c & 1]
        e(f"  ds_read_b128 v[{f+4*ks}:{f+4*ks+3}], v{24+5*b+ks} offset:{off}")
        e(f"  ds_read_b64_tr_b16 v[{f+16+4*ks}:{f+16+4*ks+1}], v{28+5*b} offset:{off+2048*ks}")
        e(f"  ds_read_b64_tr_b16 v[{f+16+4*ks+2}:{f+16+4*ks+3}], v{28+5*b} offset:{off+2048*ks+512}")
    def mfma(c, ks):
        f = FR[c & 1]
        if o.x_mfma == "none": return
        if o.x_mfma == "16":
            for h in range(2):
                t = ACC + 4 * ((2 * ks + h) % 4)
                e(f"  v_mfma_f32_16x16x32_bf16 v[{t}:{t+3}], v[{f+4*ks}:{f+4*ks+3}], v[{f+16+4*ks}:{f+16+4*ks+3}], v[{t}:{t+3}]")
            return
        if o.x_mfma == "half" and ks % 2: return
        src = "0" if (c == 0 and ks == 0) else f"v[{ACC}:{ACC+15}]"
        e(f"  v_mfma_f32_32x32x16_bf16 v[{ACC}:{ACC+15}], v[{f+4*ks}:{f+4*ks+3}], v[{f+16+4*ks}:{f+16+4*ks+3}], {src}")
    for c in range(16):
        e("  s_barrier")
        if c == 0: e("  ds_read_b64 v[22:23], v21")
        for ks in range(4):
            reads(c, ks)
            if 1 <= c <= 14:
                e(f"  s_waitcnt lgkmcnt(12)")
                mfma(c - 1, ks)
        if c >= 14:
            for ks in range(4):
                e(f"  s_waitcnt lgkmcnt({9-3*ks})")
                mfma(c, ks)
    g.stamp()
    for a in range(1, 4): e(f"  v_add_u32 v{17+a}, {16384*a}, v17")
    if o.vnop:
        for i in range(9): e("  v_mov_b32 v2, v3")
    else:
        e("  s_nop 8")
    U, E, O = 48, 64, 80
    pol = o.stpol.replace('_', ' ')
    def st1(p): return [f"  v_pk_fma_f32 v[{U+2*p}:{U+2*p+1}], v[{ACC+2*p}:{ACC+2*p+1}], v[22:23], v[22:23] op_sel:[0,0,1] op_sel_hi:[1,0,1]"]
    def st2(p): return [f"  v_exp_f32 v{E+2*p}, v{U+2*p}", f"  v_exp_f32 v{E+2*p+1}, v{U+2*p+1}"]
    def st3(p): return [f"  v_pk_fma_f32 v[{E+2*p}:{E+2*p+1}], v[{E+2*p}:{E+2*p+1}], s[46:47], s[46:47]"]
    def st4(p): return [f"  v_rcp_f32 v{E+2*p}, v{E+2*p}", f"  v_rcp_f32 v{E+2*p+1}, v{E+2*p+1}"]
    def st5(p): return [f"  v_pk_mul_f32 v[{U+2*p}:{U+2*p+1}], v[{U+2*p}:{U+2*p+1}], v[{E+2*p}:{E+2*p+1}]"]
    def st6(p): return [f"  v_cvt_pk_bf16_f32 v{O+p}, v{U+2*p}, v{U+2*p+1}"]
    def st7(p):
        if o.nostore: return []
        off = -4096 + 4096 * (p % 2)
        return [f"  global_store_short v{17+p//2}, v{O+p}, s[16:17] offset:{off} {pol}",
                f"  global_store_short_d16_hi v{17+p//2}, v{O+p}, s[16:17] offset:{off+2048} {pol}"]
    B = o.eb
    for p0 in range(0, 8, B):
        R = range(p0, p0 + B)
        for st in (st1, st2, st3, st4, st5, st6, st7):
            for p in R:
                for s in st(p): e(s)
    g.stamp()
    if o.stamps:
        e("  s_waitcnt vmcnt(0)")
        g.stamp()
        g.stamp(real=True)
        g.dump(g.sn)
    if o.xprobe:
        import probe
        probe.emit(e, o.xprobe)
    e("L_end:")
    e("  s_endpgm")
    if k == "tab":
        import mb7
        e(".p2align 6")
        e(".type L_tab,@object")
        e("L_tab:")
        for wg in range(256):
            order = [c for t, c in mb7.schedule(o.sched[4:], wg) if t == "a"]
            v = sum(c << (4 * i) for i, c in enumerate(order))
            e(f"  .long {hex(v & 0xffffffff)}, {hex(v >> 32)}")
        e(".size L_tab, 2048")
    e('.section .rodata,"a"')
    e(".p2align 6")
    e(f".amdhsa_kernel {NAME}")
    e("  .amdhsa_next_free_vgpr 128")
    e("  .amdhsa_next_free_sgpr 102")
    e("  .amdhsa_accum_offset 128")
    e("  .amdhsa_group_segment_fixed_size 0")
    e("  .amdhsa_kernarg_size 72")
    e("  .amdhsa_user_sgpr_count 2")
    e("  .amdhsa_user_sgpr_kernarg_segment_ptr 1")
    e("  .amdhsa_system_sgpr_workgroup_id_x 1")
    e("  .amdhsa_float_denorm_mode_32 3")
    e(".end_amdhsa_kernel")
    return "\n".join(g.L) + "\n"

PARAM = [
    "  v_lshlrev_b32 v27, 16, v27",
    "  v_add_f32 v27, 0x3727c5ac, v27",
    "  v_cvt_pk_bf16_f32 v27, v27, v27",
    "  v_lshlrev_b32 v27, 16, v27",
    "  v_sqrt_f32 v27, v27",
    "  v_lshlrev_b32 v26, 16, v26",
    "  v_cvt_pk_bf16_f32 v27, v27, v27",
    "  v_lshlrev_b32 v27, 16, v27",
    "  v_rcp_f32 v27, v27",
    "  v_lshlrev_b32 v28, 16, v28",
    "  v_cvt_pk_bf16_f32 v27, v27, v27",
    "  v_lshlrev_b32 v27, 16, v27",
    "  v_mul_f32 v27, v27, v28",
    "  v_cvt_pk_bf16_f32 v27, v27, v27",
    "  v_lshlrev_b32 v27, 16, v27",
    "  v_lshlrev_b32 v29, 16, v29",
    "  v_fma_f32 v29, -v26, v27, v29",
    "  v_mul_f32 v30, 0xbfb8aa3b, v27",
    "  v_mul_f32 v31, 0xbfb8aa3b, v29",
]

def parse(argv):
    ap = argparse.ArgumentParser()
    ap.add_argument("-o", default="-")
    ap.add_argument("--sched", default="duty2_6")
    ap.add_argument("--stamps", type=int, default=0)
    ap.add_argument("--pf", type=int, default=0)
    ap.add_argument("--stpol", default="sc1")
    ap.add_argument("--ahead", type=int, default=2)
    ap.add_argument("--parpos", type=int, default=0)
    ap.add_argument("--eb", type=int, default=2)
    ap.add_argument("--vnop", type=int, default=1)
    ap.add_argument("--nostore", type=int, default=0)
    ap.add_argument("--align", type=int, default=1)
    ap.add_argument("--koff", type=int, default=0)
    ap.add_argument("--lite", type=int, default=0)
    ap.add_argument("--touch", type=int, default=14)
    ap.add_argument("--spf", type=int, default=0)
    ap.add_argument("--spfdelay", type=int, default=0)
    ap.add_argument("--outtlb", type=int, default=0)
    ap.add_argument("--xprobe", default="")
    ap.add_argument("--rawpad", type=int, default=-1)
    ap.add_argument("--coff", type=int, default=0)
    ap.add_argument("--x_mfma", default="32")
    ap.add_argument("--x_noread", type=int, default=0)
    return ap.parse_args(argv)

if __name__ == "__main__":
    o = parse(sys.argv[1:])
    s = gen(o)
    if o.o == "-": sys.stdout.write(s)
    else: open(o.o, "w").write(s)
```

```python
import sys, argparse
from gen2 import HEADER, NAME, move_nibbles
from gen3 import G, PARAM

def gen(o):
    g = G(o); e = g.e
    PAR = 131072
    lds = PAR + 512
    M16 = o.mf == 16
    e(HEADER.rstrip())
    e(f"; @launch grid=(256,1,1) block=(320,1,1) lds={lds}")
    e('.amdgcn_target "amdgcn-amd-amdhsa--gfx950"')
    e(".text")
    e(".p2align 12")
    e(".fill 832, 4, 0xbf800000")
    e(f".globl {NAME}"); e(".p2align 8"); e(f".type {NAME},@function"); e(f"{NAME}:")
    g.stamp()
    e("  s_load_dwordx16 s[4:19], s[0:1], 0")
    g.stamp(real=True)
    if o.xprobe: e("  s_memrealtime s[90:91]")
    e("  v_lshrrev_b32 v2, 6, v0")
    e("  s_cmpk_ge_u32 s2, 256")
    e("  s_cbranch_scc1 L_exit")
    e("  v_readfirstlane_b32 s38, v2")
    if o.stamps: e("  s_load_dwordx2 s[54:55], s[0:1], 64")
    e("  s_bfe_u32 s28, s2, 0x20006")
    e("  s_bfe_u32 s29, s2, 0x30003")
    e("  s_bfe_u32 s32, s2, 0x20001")
    e("  s_and_b32 s33, s2, 1")
    e("  s_lshl2_add_u32 s34, s32, s28")
    e("  s_lshl3_add_u32 s35, s33, s29")
    e("  s_lshl_b32 s37, s35, 7")
    e("  s_cmp_eq_u32 s38, 0")
    e("  s_cbranch_scc1 L_loader")
    e("  s_cmp_lg_u32 s38, 1")
    e("  s_cbranch_scc1 L_cons")
    e("  v_and_b32 v9, 63, v0")
    e("  v_lshl_add_u32 v9, v9, 1, s37")
    e("  s_waitcnt lgkmcnt(0)")
    for i in range(4): e(f"  global_load_ushort v{36+i}, v9, s[{8+2*i}:{9+2*i}]")
    e("  s_branch L_cons")
    e("L_exit:")
    e("  s_endpgm")
    e("L_loader:")
    if o.prio: e(f"  s_setprio {o.prio}")
    buf = o.sched == "buf"
    if buf:
        e("  s_lshl_b32 s40, s2, 7")
        e("  s_waitcnt lgkmcnt(0)")
        e("  s_load_dwordx4 s[84:87], s[18:19], s40")
    e("  v_lshrrev_b32 v3, 3, v0")
    e("  v_lshlrev_b32 v3, 11, v3")
    e("  v_and_b32 v5, 7, v0")
    e("  v_lshrrev_b32 v6, 4, v0")
    e("  v_xor_b32 v7, v5, v6")
    e("  s_lshl_b32 s36, s34, 17")
    e("  v_lshl_add_u32 v10, v7, 4, v3")
    e("  v_add_u32 v10, s36, v10")
    e("  v_xor_b32 v11, 64, v10")
    e("  v_add_u32 v11, 15360, v11")
    e("  v_add_u32 v12, 30720, v10")
    e("  v_add_u32 v13, 30720, v11")
    for q in range(4): e(f"  v_add_u32 v{14+q}, 65536, v{10+q}")
    e("  v_lshlrev_b32 v6, 2, v6")
    e("  v_and_b32 v6, 4, v6")
    e("  v_xor_b32 v7, v5, v6")
    e("  s_bitset1_b32 s37, 21")
    e("  v_lshl_add_u32 v18, v7, 4, v3")
    e("  v_add_u32 v18, s37, v18")
    if M16:
        e("  v_xor_b32 v19, 32, v18")
        e("  v_add_u32 v19, 15360, v19")
    else:
        e("  v_add_u32 v19, 15360, v18")
    e("  v_add_u32 v20, 30720, v18")
    e("  v_add_u32 v21, 30720, v19")
    for q in range(4): e(f"  v_add_u32 v{22+q}, 65536, v{18+q}")
    e("  s_mov_b32 s22, 0x200000")
    e("  s_mov_b32 s23, 0x20000")
    e("  s_mov_b32 s26, 0x400000")
    e("  s_mov_b32 s27, 0x20000")
    late = []
    D = o.lead
    if not buf:
        e("  s_cmp_gt_u32 s29, 3")
        e("  s_subb_u32 s44, s29, 0")
        e("  s_lshl1_add_u32 s44, s44, s33")
        e("  s_add_u32 s44, s44, s34")
        e("  s_cmp_ge_u32 s44, 14")
        e("  s_cselect_b32 s41, 14, 0")
        e("  s_sub_u32 s44, s44, s41")
        e("  s_cmp_ge_u32 s44, 14")
        e("  s_cselect_b32 s41, 12, -2")
        e("  s_sub_u32 s44, s44, s41")
        e("  s_cmp_eq_u32 s29, 3")
        e("  s_cselect_b32 s44, 0, s44")
        e(f"  s_sub_i32 s39, s44, {D}")
        e("  s_max_i32 s39, s39, 0")
        e("  s_cmp_eq_u32 s39, 0")
        e("  s_cselect_b32 s42, s44, 0")
        e("  s_cmp_eq_u32 s42, 0")
        e("  s_cselect_b32 s40, 1, 0")
        e("  s_cmp_eq_u32 s39, 1")
        e("  s_cselect_b32 s40, s44, s40")
        l = late.append
        l("  s_mov_b32 s30, 0x76543210")
        l("  s_mov_b32 s31, 0xfedcba98")
        l("  s_lshl_b32 s45, s44, 2")
        l("  s_lshl_b32 s3, s39, 2")
        move_nibbles(l, "s45", "s3", 1)
        l("  s_max_u32 s39, s39, 1")
        l("  s_cmp_eq_u32 s29, 3")
        l("  s_cselect_b32 s39, -1, s39")
        l("  s_lshr_b32 s45, s28, 1")
        l("  s_lshl1_add_u32 s44, s44, s45")
        l("  s_lshl_b32 s44, s44, 16")
        l("  s_lshl_b32 s45, s33, 10")
        l("  s_add_u32 s44, s44, s45")
        l("  s_add_u32 s44, s44, 0x200180")
    late.append("  v_lshrrev_b32 v33, 1, v0")
    late.append("  v_lshlrev_b32 v33, 11, v33")
    late.append("  v_and_b32 v34, 1, v0")
    late.append("  v_lshl_add_u32 v33, v34, 6, v33")
    def decode(n):
        r = "s30" if n < 8 else "s31"
        a, b = ("s42", "s43") if n % 2 == 0 else ("s40", "s41")
        d = [f"  s_bfe_u32 {a}, {r}, {0x40000 + 4*(n%8)}", f"  s_lshl_b32 {b}, {a}, 17", f"  s_lshl_b32 {a}, {a}, 7"]
        if n < 2 and not buf: d[0] = "  s_nop 0"
        return d
    e("  s_mov_b32 m0, 0")
    if not buf:
        for s in decode(0)[1:]: e(s)
    e("  s_waitcnt lgkmcnt(0)")
    if buf:
        e("  s_mov_b64 s[30:31], s[84:85]")
        e("  s_mov_b32 s39, s86")
        e("  s_mov_b32 s44, s87")
        for s in decode(0): e(s)
    if o.lite: e("  s_memrealtime s[80:81]")
    e("  s_mov_b64 s[20:21], s[4:5]")
    g.stamp()
    AH = o.ahead
    for n in range(16):
        a, b = ("s42", "s43") if n % 2 == 0 else ("s40", "s41")
        ld = []
        for q in range(8): ld.append(f"  buffer_load_dwordx4 v{10+q}, s[20:23], {a} offen offset:{1024*(q%4)} lds")
        for q in range(8): ld.append(f"  buffer_load_dwordx4 v{18+q}, s[24:27], {b} offen offset:{1024*(q%4)} lds")
        nxt = decode(n + 1) if n < 15 and n != 1 else ["  s_nop 0"] * 3
        for q in range(16):
            if q == AH and n >= 3:
                e(f"  s_waitcnt vmcnt({32+AH})")
                e("  s_barrier")
                g.stamp()
            e(ld[q])
            if n == 0 and q == 0: e("  s_mov_b64 s[24:25], s[6:7]")
            if q % 4 == 3 and not (n == 15 and q == 15):
                if q == 15 and n == 7: e("  s_mov_b32 m0, 0")
                else: e("  s_addk_i32 m0, 0x1000")
                if q < 15: e(nxt[q // 4])
        if n == 1:
            for s in late: e(s)
            for s in decode(2): e(s)
        if 1 <= n <= (15 - D if not buf else 14):
            e(f"  s_cmp_lg_u32 s39, {n}")
            e(f"  s_cbranch_scc1 L_nt{n}")
            e(f"  buffer_load_dword v34, v33, s[24:27], s44 offen")
            e(f"L_nt{n}:")
        elif n < 15:
            e("  s_nop 0")
    tail = (32, 16, 4, 0) if o.fine else (32, 16, 0)
    for n in tail:
        e(f"  s_waitcnt vmcnt({n})")
        e("  s_barrier")
        if n != 4: g.stamp()
    if o.warm == 1:
        e("  v_mov_b32 v1, 0")
        e("  global_load_dword v2, v1, s[16:17]")
    if o.warm == 2:
        e("  v_mov_b32 v1, 0")
        e("  s_mov_b64 exec, 1")
        e("  global_store_dword v1, v1, s[18:19]")
        e("  s_mov_b64 exec, -1")
    if o.stamps: g.dump(g.sn)
    if o.lite:
        e("  s_memrealtime s[82:83]")
        e("  s_load_dwordx2 s[54:55], s[0:1], 64")
        e("  s_waitcnt lgkmcnt(0)")
        e("  s_lshl_b32 s44, s2, 3")
        e("  v_mov_b32 v1, s44")
        e("  v_mov_b32 v2, s80")
        e("  v_mov_b32 v3, s82")
        e("  s_mov_b64 exec, 1")
        e("  global_store_dwordx2 v1, v[2:3], s[54:55]")
    e("  s_endpgm")
    g.sn = 2
    e(".p2align 12")
    e("L_cons:")
    e("  s_sub_u32 s40, s38, 1")
    e("  s_lshr_b32 s41, s40, 1")
    e("  s_and_b32 s42, s40, 1")
    e("  v_and_b32 v8, 31, v0")
    e("  v_bfe_u32 v16, v0, 5, 1")
    e("  s_lshl_b32 s44, s42, 12")
    e("  v_bfe_u32 v15, v0, 1, 3")
    if not M16:
        e("  v_xor_b32 v15, v15, v16")
        e("  v_lshlrev_b32 v15, 4, v15")
        e("  v_lshl_add_u32 v14, v8, 7, v15")
        e("  v_add_u32 v24, s44, v14")
        e("  v_xor_b32 v25, 32, v24")
        e("  v_xor_b32 v26, 64, v24")
        e("  v_xor_b32 v27, 0x60, v24")
        e("  v_bfe_u32 v15, v0, 2, 2")
        e("  v_lshlrev_b32 v14, 7, v15")
        e("  v_lshl_add_u32 v14, v16, 10, v14")
        e("  v_lshrrev_b32 v15, 1, v15")
        e("  v_xor_b32 v15, s41, v15")
        e("  v_lshl_add_u32 v14, v15, 6, v14")
        e("  v_bfe_u32 v15, v0, 4, 1")
        e("  v_lshl_add_u32 v14, v15, 5, v14")
        e("  v_and_b32 v15, 3, v0")
        e("  v_lshl_add_u32 v14, v15, 3, v14")
        e("  v_add_u32 v28, 8192, v14")
        NA = 5
    else:
        e("  v_bfe_u32 v13, v0, 4, 2")
        e("  v_xor_b32 v15, v15, v13")
        e("  v_lshlrev_b32 v15, 4, v15")
        e("  v_and_b32 v12, 15, v0")
        e("  v_lshl_add_u32 v14, v12, 7, v15")
        e("  v_add_u32 v24, s44, v14")
        e("  v_xor_b32 v25, 64, v24")
        e("  v_bfe_u32 v15, v0, 2, 2")
        e("  v_lshlrev_b32 v14, 7, v15")
        e("  v_lshl_add_u32 v14, v13, 10, v14")
        e("  v_lshrrev_b32 v15, 1, v15")
        e("  v_xor_b32 v15, s41, v15")
        e("  v_lshl_add_u32 v14, v15, 6, v14")
        e("  v_bfe_u32 v15, v0, 4, 1")
        e("  v_lshl_add_u32 v14, v15, 5, v14")
        e("  v_and_b32 v15, 3, v0")
        e("  v_lshl_add_u32 v14, v15, 3, v14")
        e("  v_add_u32 v26, 8192, v14")
        e("  v_xor_b32 v27, 32, v26")
        NA = 4
    for i in range(NA):
        e(f"  v_add_u32 v{29+i}, 65536, v{24+i}")
    e("  s_lshl1_add_u32 s44, s34, s42")
    e("  s_lshl_b32 s44, s44, 16")
    e("  s_lshl1_add_u32 s45, s35, s41")
    e("  s_lshl_b32 s45, s45, 6")
    e("  s_add_u32 s44, s44, s45")
    e("  s_add_u32 s44, s44, 4096")
    e(f"  v_lshlrev_b32 v17, {14 if M16 else 13}, v16")
    e("  v_lshl_add_u32 v17, v8, 1, v17")
    e("  v_add_u32 v17, s44, v17")
    if M16:
        e("  v_add_u32 v18, 8192, v17")
        e("  v_add_u32 v19, 32768, v17")
        e("  v_add_u32 v20, 40960, v17")
    else:
        for a in range(1, 4): e(f"  v_add_u32 v{17+a}, {16384*a}, v17")
    e("  s_lshl_b32 s44, s41, 8")
    e(f"  s_add_u32 s44, s44, {PAR}")
    e(f"  v_lshl_add_u32 v21, v{12 if M16 else 8}, 3, s44")
    e("  s_mov_b32 s46, 0xbfb8aa3b")
    e("  s_mov_b32 s47, 0xbfb8aa3b")
    e("  s_waitcnt lgkmcnt(0)")
    ACC = 112
    FR = [48, 80]
    def slot(c):
        s = c % 8
        return (s // 4) * 5, (s % 4) * 16384, FR[c & 1]
    def rx(c, k):
        b, off, f = slot(c)
        if M16:
            e(f"  ds_read_b128 v[{f+4*k}:{f+4*k+3}], v{24+b+(k>>1)} offset:{off+2048*(k&1)}")
        else:
            e(f"  ds_read_b128 v[{f+4*k}:{f+4*k+3}], v{24+b+k} offset:{off}")
    def rw(c, k):
        b, off, f = slot(c)
        for h in range(2):
            d = f + 16 + 4 * k + 2 * h
            if M16:
                e(f"  ds_read_b64_tr_b16 v[{d}:{d+1}], v{26+b+(k&1)} offset:{off+4096*(k>>1)+512*h}")
            else:
                e(f"  ds_read_b64_tr_b16 v[{d}:{d+1}], v{28+b} offset:{off+2048*k+512*h}")
    def mf32(c, ks):
        f = FR[c & 1]
        src = "0" if (c == 0 and ks == 0) else f"v[{ACC}:{ACC+15}]"
        e(f"  v_mfma_f32_32x32x16_bf16 v[{ACC}:{ACC+15}], v[{f+4*ks}:{f+4*ks+3}], v[{f+16+4*ks}:{f+16+4*ks+3}], {src}")
    def mf16(c, ks, mt, t):
        f = FR[c & 1]; d = ACC + 8 * mt + 4 * t
        src = "0" if (c == 0 and ks == 0) else f"v[{d}:{d+3}]"
        x = f + 4 * (2 * ks + mt); w = f + 16 + 4 * (2 * ks + t)
        e(f"  v_mfma_f32_16x16x32_bf16 v[{d}:{d+3}], v[{x}:{x+3}], v[{w}:{w+3}], {src}")
    def group(c, k):
        if not M16: mf32(c, k)
        elif k % 2 == 0: mf16(c, k >> 1, 0, 0); mf16(c, k >> 1, 0, 1)
        else: mf16(c, k >> 1, 1, 1); mf16(c, k >> 1, 1, 0)
    NP = o.npipe
    def drain(c):
        for k in range(4):
            if not M16: e(f"  s_waitcnt lgkmcnt({9-3*k})")
            elif k % 2 == 0: e(f"  s_waitcnt lgkmcnt({6-3*k})")
            group(c, k)
    for c in range(15):
        e("  s_barrier")
        if c == 2:
            if M16: e("  ds_read2_b64 v[4:7], v21 offset0:0 offset1:16")
            else: e("  ds_read_b64 v[4:5], v21")
        for k in range(4):
            rx(c, k); rw(c, k)
            if 1 <= c <= NP:
                if not M16: e("  s_waitcnt lgkmcnt(12)")
                elif k % 2 == 0: e("  s_waitcnt lgkmcnt(9)")
                group(c - 1, k)
        if c >= NP: drain(c)
        if c == 0:
            e("  s_cmp_lg_u32 s38, 1")
            e("  s_cbranch_scc1 L_nopar")
            e("  s_waitcnt vmcnt(0)")
            for s in PARAM:
                for a, b_ in ((26, 36), (27, 37), (28, 38), (29, 39), (30, 40), (31, 41)): s = s.replace(f"v{a}", f"v{b_}")
                e(s)
            e("  v_and_b32 v9, 63, v0")
            e("  v_lshlrev_b32 v9, 3, v9")
            e(f"  v_add_u32 v9, {PAR}, v9")
            e("  ds_write_b64 v9, v[40:41]")
            e("  s_waitcnt lgkmcnt(0)")
            e("L_nopar:")
    e("  s_barrier")
    if o.fine:
        rx(15, 0); rw(15, 0); rx(15, 1); rw(15, 1); rx(15, 2); rx(15, 3)
        if o.fine == 1:
            if M16:
                e("  s_waitcnt lgkmcnt(2)"); group(15, 0); group(15, 1)
            else:
                e("  s_waitcnt lgkmcnt(5)"); group(15, 0); e("  s_waitcnt lgkmcnt(2)"); group(15, 1)
            e("  s_barrier")
            rw(15, 2); rw(15, 3)
        else:
            e("  s_barrier")
            rw(15, 2); rw(15, 3)
            if M16:
                e("  s_waitcnt lgkmcnt(6)"); group(15, 0); group(15, 1)
            else:
                e("  s_waitcnt lgkmcnt(9)"); group(15, 0); e("  s_waitcnt lgkmcnt(6)"); group(15, 1)
        if M16:
            e("  s_waitcnt lgkmcnt(2)")
            mf16(15, 1, 0, 0)
            e("  s_waitcnt lgkmcnt(0)")
            mf16(15, 1, 0, 1); mf16(15, 1, 1, 0); mf16(15, 1, 1, 1)
        else:
            e("  s_waitcnt lgkmcnt(2)"); group(15, 2)
            e("  s_waitcnt lgkmcnt(0)"); group(15, 3)
    else:
        for k in range(4): rx(15, k); rw(15, k)
        for k in range(4):
            if not M16: e(f"  s_waitcnt lgkmcnt({9-3*k})")
            elif k % 2 == 0: e(f"  s_waitcnt lgkmcnt({6-3*k})")
            if M16 and k == 3: mf16(15, 1, 1, 0); mf16(15, 1, 1, 1)
            else: group(15, k)
    g.stamp()
    U, E, O = 48, 64, 80
    pol = o.stpol.replace('_', ' ')
    def par(p): return "v[6:7]" if (M16 and (p >> 1) & 1) else "v[4:5]"
    def st1(p): return [f"  v_pk_fma_f32 v[{U+2*p}:{U+2*p+1}], v[{ACC+2*p}:{ACC+2*p+1}], {par(p)}, {par(p)} op_sel:[0,0,1] op_sel_hi:[1,0,1]"]
    def st2(p): return [f"  v_exp_f32 v{E+2*p}, v{U+2*p}", f"  v_exp_f32 v{E+2*p+1}, v{U+2*p+1}"]
    def st3(p): return [f"  v_pk_fma_f32 v[{E+2*p}:{E+2*p+1}], v[{E+2*p}:{E+2*p+1}], s[46:47], s[46:47]"]
    def st4(p): return [f"  v_rcp_f32 v{E+2*p}, v{E+2*p}", f"  v_rcp_f32 v{E+2*p+1}, v{E+2*p+1}"]
    def st5(p): return [f"  v_pk_mul_f32 v[{U+2*p}:{U+2*p+1}], v[{U+2*p}:{U+2*p+1}], v[{E+2*p}:{E+2*p+1}]"]
    def st6(p): return [f"  v_cvt_pk_bf16_f32 v{O+p}, v{U+2*p}, v{U+2*p+1}"]
    def st7(p):
        off = -4096 + 4096 * (p % 2)
        return [f"  global_store_short v{17+p//2}, v{O+p}, s[16:17] offset:{off} {pol}",
                f"  global_store_short_d16_hi v{17+p//2}, v{O+p}, s[16:17] offset:{off+2048} {pol}"]
    e("  s_nop 4" if M16 else "  s_nop 11")
    batches = [(0, 2), (1, 3), (4, 6), (5, 7)] if M16 else [(0, 1), (2, 3), (4, 5), (6, 7)]
    pend = []
    for bi, R in enumerate(batches):
        body = [s for st in (st1, st2, st3, st4, st5, st6) for p in R for s in st(p)]
        if M16 and pend:
            body.insert(2, pend.pop(0))
        pos = [int(x) for x in o.spos.split("_")]
        for k, s in enumerate(body):
            e(s)
            for q in pos:
                if q == k and pend:
                    e(pend.pop(0))
                    if o.est and bi == 1: g.stamp()
        assert not pend
        if o.est: g.stamp()
        pend = ([f"  v_permlane16_swap_b32 v{O+R[0]}, v{O+R[1]}"] if M16 else []) + st7(R[0]) + st7(R[1])
        if o.nostore: pend = pend[:-4]
    if M16: e("  s_nop 1")
    for s in pend: e(s)
    g.stamp()
    if o.stamps:
        e("  s_waitcnt vmcnt(0)")
        g.stamp()
        g.stamp(real=True)
        g.dump(g.sn)
    if o.xprobe:
        import probe
        probe.emit(e, o.xprobe)
    e("L_end:")
    e("  s_endpgm")
    e('.section .rodata,"a"')
    e(".p2align 6")
    e(f".amdhsa_kernel {NAME}")
    e("  .amdhsa_next_free_vgpr 128")
    e("  .amdhsa_next_free_sgpr 102")
    e("  .amdhsa_accum_offset 128")
    e("  .amdhsa_group_segment_fixed_size 0")
    e("  .amdhsa_kernarg_size 72")
    e("  .amdhsa_user_sgpr_count 2")
    e("  .amdhsa_user_sgpr_kernarg_segment_ptr 1")
    e("  .amdhsa_system_sgpr_workgroup_id_x 1")
    e("  .amdhsa_float_denorm_mode_32 3")
    e(".end_amdhsa_kernel")
    return "\n".join(g.L) + "\n"

def parse(argv):
    ap = argparse.ArgumentParser()
    ap.add_argument("-o", default="-")
    ap.add_argument("--sched", default="jl")
    ap.add_argument("--lead", type=int, default=5)
    ap.add_argument("--stamps", type=int, default=0)
    ap.add_argument("--stpol", default="sc1")
    ap.add_argument("--ahead", type=int, default=2)
    ap.add_argument("--mf", type=int, default=16)
    ap.add_argument("--fine", type=int, default=2)
    ap.add_argument("--prio", type=int, default=0)
    ap.add_argument("--est", type=int, default=0)
    ap.add_argument("--warm", type=int, default=0)
    ap.add_argument("--spos", default="2_5_9_12")
    ap.add_argument("--nostore", type=int, default=0)
    ap.add_argument("--npipe", type=int, default=9)
    ap.add_argument("--lite", type=int, default=0)
    ap.add_argument("--xprobe", default="")
    return ap.parse_args(argv)

if __name__ == "__main__":
    o = parse(sys.argv[1:])
    s = gen(o)
    if o.o == "-": sys.stdout.write(s)
    else: open(o.o, "w").write(s)
```

```python
import sys, argparse
from gen2 import HEADER, NAME, move_nibbles
from gen3 import G, PARAM

def gen(o):
    g = G(o); e = g.e
    PAR = 131072
    lds = PAR + 512
    e(HEADER.rstrip())
    e(f"; @launch grid=(256,1,1) block=(320,1,1) lds={lds}")
    e('.amdgcn_target "amdgcn-amd-amdhsa--gfx950"')
    e(".text")
    e(".p2align 12")
    e(".fill 832, 4, 0xbf800000")
    e(f".globl {NAME}"); e(".p2align 8"); e(f".type {NAME},@function"); e(f"{NAME}:")
    g.stamp()
    e("  s_load_dwordx16 s[4:19], s[0:1], 0")
    g.stamp(real=True)
    if o.xprobe or o.span: e("  s_memrealtime s[90:91]")
    e("  v_lshrrev_b32 v2, 6, v0")
    e("  s_cmpk_ge_u32 s2, 256")
    e("  s_cbranch_scc1 L_exit")
    e("  v_readfirstlane_b32 s38, v2")
    if o.stamps: e("  s_load_dwordx2 s[54:55], s[0:1], 64")
    e("  s_bfe_u32 s28, s2, 0x20006")
    e("  s_bfe_u32 s29, s2, 0x30003")
    e("  s_bfe_u32 s32, s2, 0x20001")
    e("  s_and_b32 s33, s2, 1")
    e("  s_lshl2_add_u32 s34, s32, s28")
    e("  s_lshl3_add_u32 s35, s33, s29")
    e("  s_lshl_b32 s37, s35, 7")
    e("  s_cmp_eq_u32 s38, 0")
    e("  s_cbranch_scc1 L_loader")
    e("  s_cmp_lg_u32 s38, 1")
    e("  s_cbranch_scc1 L_cons")
    e("  v_and_b32 v9, 63, v0")
    e("  v_lshl_add_u32 v9, v9, 1, s37")
    e("  s_waitcnt lgkmcnt(0)")
    for i in range(4): e(f"  global_load_ushort v{36+i}, v9, s[{8+2*i}:{9+2*i}]")
    e("  s_branch L_cons")
    e("L_exit:")
    e("  s_endpgm")
    e("L_loader:")
    e("  s_cmp_gt_u32 s29, 3")
    e("  s_subb_u32 s45, s29, 0")
    e("  s_lshl1_add_u32 s45, s45, s33")
    e("  s_add_u32 s45, s45, s32")
    e("  s_mul_i32 s41, s28, 7")
    e("  s_add_u32 s41, s41, 1")
    e("  s_lshr_b32 s41, s41, 1")
    e("  s_add_u32 s45, s45, s41")
    e("  s_cmp_ge_u32 s45, 14")
    e("  s_cselect_b32 s41, 12, -2")
    e("  s_sub_u32 s45, s45, s41")
    e("  s_cmp_eq_u32 s29, 3")
    e("  s_cselect_b32 s45, 1, s45")
    e("  s_lshl_b32 s45, s45, 2")
    if o.ktab:
        e("  s_lshl2_add_u32 s41, s45, 128")
        e("  s_load_dwordx4 s[84:87], s[0:1], s41")
    e("  v_lshrrev_b32 v3, 3, v0")
    e("  v_lshlrev_b32 v3, 11, v3")
    e("  v_and_b32 v5, 7, v0")
    e("  v_lshrrev_b32 v6, 4, v0")
    e("  v_xor_b32 v7, v5, v6")
    e("  s_lshl_b32 s36, s34, 17")
    e("  v_lshl_add_u32 v10, v7, 4, v3")
    e("  v_add_u32 v10, s36, v10")
    e("  v_xor_b32 v11, 64, v10")
    e("  v_add_u32 v11, 15360, v11")
    e("  v_add_u32 v12, 30720, v10")
    e("  v_add_u32 v13, 30720, v11")
    for q in range(4): e(f"  v_add_u32 v{14+q}, 65536, v{10+q}")
    e("  v_lshlrev_b32 v6, 2, v6")
    e("  v_and_b32 v6, 4, v6")
    e("  v_xor_b32 v7, v5, v6")
    e("  s_bitset1_b32 s37, 21")
    e("  v_lshl_add_u32 v18, v7, 4, v3")
    e("  v_add_u32 v18, s37, v18")
    e("  v_xor_b32 v19, 32, v18")
    e("  v_add_u32 v19, 15360, v19")
    e("  v_add_u32 v20, 30720, v18")
    e("  v_add_u32 v21, 30720, v19")
    for q in range(4): e(f"  v_add_u32 v{22+q}, 65536, v{18+q}")
    e("  s_mov_b32 s22, 0x200000")
    e("  s_mov_b32 s23, 0x20000")
    e("  s_mov_b32 s26, 0x400000")
    e("  s_mov_b32 s27, 0x20000")
    sig = [int(x, 16) for x in o.sig]
    pos = [0, 1] + [int(x, 16) for x in o.pos]
    tst = [0, 0] + [int(x, 16) for x in (o.ts or o.pos)]
    assert sorted(sig) == list(range(16)) and sig[0] == 0 and len(pos) == 16 and len(tst) == 16
    assert all(1 <= pos[c] <= c for c in range(1, 16)) and all(1 <= tst[c] <= 14 for c in range(2, 16))
    nib = lambda v: sum(x << (4 * k) for k, x in enumerate(v))
    def const64(em, r, v):
        em(f"  s_mov_b32 s{r}, {hex(v & 0xffffffff)}")
        em(f"  s_mov_b32 s{r+1}, {hex(v >> 32)}")
    late = []; l = late.append
    if not o.ktab:
        const64(e, 30, nib(sig))
        const64(e, 46, nib(pos))
        e("  s_lshr_b64 s[48:49], s[30:31], s45")
        e("  s_and_b32 s44, s48, 15")
        e("  s_lshr_b64 s[46:47], s[46:47], s45")
        e("  s_and_b32 s3, s46, 15")
        e("  s_cmp_eq_u32 s3, 1")
        e(f"  s_cselect_b32 s40, s44, {sig[1]}")
        l("  s_lshl_b32 s3, s3, 2")
        move_nibbles(l, "s45", "s3", 1)
        const64(l, 46, nib(tst))
        l("  s_lshr_b64 s[46:47], s[46:47], s45")
        l("  s_and_b32 s39, s46, 15")
    else:
        tst = list(range(1, 15)) * 2
        l("  s_mov_b64 s[30:31], s[84:85]")
        l("  s_mov_b32 s39, s86")
        l("  s_mov_b32 s44, s87")
    l("  s_and_b32 s45, s28, 1")
    l("  s_lshl1_add_u32 s44, s44, s45")
    l("  s_lshl_b32 s44, s44, 16")
    l("  s_lshl_b32 s45, s33, 10")
    l("  s_add_u32 s44, s44, s45")
    l("  s_add_u32 s44, s44, 0x200180")
    l("  v_lshrrev_b32 v33, 1, v0")
    l("  v_lshlrev_b32 v33, 11, v33")
    l("  v_and_b32 v34, 1, v0")
    l("  v_lshl_add_u32 v33, v34, 6, v33")
    def regs(n):
        if n == 0: return "0", "0"
        return ("s42", "s43") if n % 2 == 0 else ("s40", "s41")
    def decode(n):
        r = "s30" if n < 8 else "s31"
        a, b = regs(n)
        d = [f"  s_bfe_u32 {a}, {r}, {0x40000 + 4*(n%8)}", f"  s_lshl_b32 {b}, {a}, 17", f"  s_lshl_b32 {a}, {a}, 7"]
        if n == 1: d[0] = "  s_bfe_u32 s40, s84, 0x40004" if o.ktab else "  s_nop 0"
        return d
    e("  s_mov_b32 m0, 0")
    e("  s_waitcnt lgkmcnt(0)")
    e("  s_mov_b64 s[20:21], s[4:5]")
    g.stamp()
    AH = o.ahead
    cur_m0 = 0
    for n in range(16):
        a, b = regs(n)
        order = [0, 2, 3, 1] if (n == 15 and o.tail == "B") else [0, 1, 2, 3]
        nxt = decode(n + 1) if n < 15 and n != 1 else ["  s_nop 0"] * 3
        for gi, grp in enumerate(order):
            for q in range(4):
                if 4 * gi + q == AH and n >= 3:
                    e(f"  s_waitcnt vmcnt({32+AH})")
                    e("  s_barrier")
                    g.stamp()
                if grp < 2: e(f"  buffer_load_dwordx4 v{10+4*grp+q}, s[20:23], {a} offen offset:{1024*q} lds")
                else: e(f"  buffer_load_dwordx4 v{10+4*grp+q}, s[24:27], {b} offen offset:{1024*q} lds")
                if n == 0 and gi == 0 and q == 0: e("  s_mov_b64 s[24:25], s[6:7]")
            if n == 15 and gi == 3: break
            tgt = (n % 8) * 16384 + 4096 * order[gi + 1] if gi < 3 else ((n + 1) % 8) * 16384
            if tgt == 0: e("  s_mov_b32 m0, 0")
            else: e(f"  s_addk_i32 m0, {(tgt - cur_m0) & 0xffff}")
            cur_m0 = tgt
            if gi < 3: e(nxt[gi])
        if n == 1:
            for s in late: e(s)
            for s in decode(2): e(s)
        if n in tst[2:]:
            e(f"  s_cmp_lg_u32 s39, {n}")
            e(f"  s_cbranch_scc1 L_nt{n}")
            e(f"  buffer_load_dword v34, v33, s[24:27], s44 offen")
            e(f"L_nt{n}:")
        elif n < 15:
            e("  s_nop 0")
    for n in (32, 16, 4, 0):
        e(f"  s_waitcnt vmcnt({n})")
        e("  s_barrier")
        g.stamp()
    if o.stamps: g.dump(g.sn)
    e("  s_endpgm")
    g.sn = 2
    e(".p2align 12")
    e("L_cons:")
    e("  s_sub_u32 s40, s38, 1")
    e("  s_lshr_b32 s41, s40, 1")
    e("  s_and_b32 s42, s40, 1")
    e("  v_and_b32 v8, 31, v0")
    e("  v_bfe_u32 v16, v0, 5, 1")
    e("  s_lshl_b32 s44, s42, 11")
    e("  v_bfe_u32 v15, v0, 1, 3")
    e("  v_bfe_u32 v13, v0, 4, 2")
    e("  v_xor_b32 v15, v15, v13")
    e("  v_lshlrev_b32 v15, 4, v15")
    e("  v_and_b32 v12, 15, v0")
    e("  v_lshl_add_u32 v14, v12, 7, v15")
    e("  v_add_u32 v24, s44, v14")
    e("  v_xor_b32 v25, 64, v24")
    e("  v_bfe_u32 v15, v0, 2, 2")
    e("  v_lshlrev_b32 v14, 7, v15")
    e("  v_lshl_add_u32 v14, v13, 10, v14")
    e("  v_lshrrev_b32 v15, 1, v15")
    e("  v_xor_b32 v15, s41, v15")
    e("  v_lshl_add_u32 v14, v15, 6, v14")
    e("  v_bfe_u32 v15, v0, 4, 1")
    e("  v_lshl_add_u32 v14, v15, 5, v14")
    e("  v_and_b32 v15, 3, v0")
    e("  v_lshl_add_u32 v14, v15, 3, v14")
    e("  v_add_u32 v26, 8192, v14")
    e("  v_xor_b32 v27, 32, v26")
    for i in range(4):
        e(f"  v_add_u32 v{28+i}, 65536, v{24+i}")
    e("  s_lshl2_add_u32 s44, s34, s42")
    e("  s_lshl_b32 s44, s44, 15")
    e("  s_lshl1_add_u32 s45, s35, s41")
    e("  s_lshl_b32 s45, s45, 6")
    e("  s_add_u32 s44, s44, s45")
    e("  s_add_u32 s44, s44, 4096")
    if o.noswap:
        e("  v_lshlrev_b32 v17, 13, v13")
        e("  v_lshl_add_u32 v17, v12, 1, v17")
        e("  v_add_u32 v17, s44, v17")
        e("  v_add_u32 v18, 32, v17")
        e("  v_add_u32 v19, 65536, v17")
        e("  v_add_u32 v20, 65568, v17")
    else:
        e("  v_lshlrev_b32 v17, 14, v16")
        e("  v_lshl_add_u32 v17, v8, 1, v17")
        e("  v_add_u32 v17, s44, v17")
        e("  v_add_u32 v18, 8192, v17")
        e("  v_add_u32 v19, 65536, v17")
        e("  v_add_u32 v20, 73728, v17")
    e("  s_lshl_b32 s44, s41, 8")
    e(f"  s_add_u32 s44, s44, {PAR}")
    e("  v_lshl_add_u32 v21, v12, 3, s44")
    e("  s_mov_b32 s46, 0xbfb8aa3b")
    e("  s_mov_b32 s47, 0xbfb8aa3b")
    e("  s_waitcnt lgkmcnt(0)")
    ACC = 112
    FR = [48, 80]
    def slot(c):
        s = c % 8
        return (s // 4) * 4, (s % 4) * 16384, FR[c & 1]
    def rx(c, ks, mt):
        b, off, f = slot(c); d = f + 4 * (2 * ks + mt)
        e(f"  ds_read_b128 v[{d}:{d+3}], v{24+b+ks} offset:{off+4096*mt}")
    def rw(c, ks, t):
        b, off, f = slot(c)
        for h in range(2):
            d = f + 16 + 4 * (2 * ks + t) + 2 * h
            e(f"  ds_read_b64_tr_b16 v[{d}:{d+1}], v{26+b+t} offset:{off+4096*ks+512*h}")
    def mfs(c, ks, mt, t):
        f = FR[c & 1]; d = ACC + 8 * mt + 4 * t
        src = "0" if (c == 0 and ks == 0) else f"v[{d}:{d+3}]"
        x = f + 4 * (2 * ks + mt); w = f + 16 + 4 * (2 * ks + t)
        return f"  v_mfma_f32_16x16x32_bf16 v[{d}:{d+3}], v[{x}:{x+3}], v[{w}:{w+3}], {src}"
    def mf(c, ks, mt, t): e(mfs(c, ks, mt, t))
    GR = ((0, 0), (0, 1), (1, 1), (1, 0))
    skew = o.skew
    for c in range(15):
        e("  s_barrier")
        if c == 2: e("  ds_read2_b64 v[4:7], v21 offset0:0 offset1:16")
        for k in range(4):
            rx(c, k >> 1, k & 1); rw(c, k >> 1, k & 1)
            if skew and c >= 1:
                if k == 0: e("  s_waitcnt lgkmcnt(3)")
                mf(c - 1, 1, *GR[k])
        e("  s_waitcnt lgkmcnt(6)")
        for k in range(4): mf(c, 0, *GR[k])
        if not skew:
            e("  s_waitcnt lgkmcnt(0)")
            for k in range(4): mf(c, 1, *GR[k])
        if c == 0:
            e("  s_cmp_lg_u32 s38, 1")
            e("  s_cbranch_scc1 L_nopar")
            e("  s_waitcnt vmcnt(0)")
            for s in PARAM:
                for a, b_ in ((26, 36), (27, 37), (28, 38), (29, 39), (30, 40), (31, 41)): s = s.replace(f"v{a}", f"v{b_}")
                e(s)
            e("  v_and_b32 v9, 63, v0")
            e("  v_lshlrev_b32 v9, 3, v9")
            e(f"  v_add_u32 v9, {PAR}, v9")
            e("  ds_write_b64 v9, v[40:41]")
            e("  s_waitcnt lgkmcnt(0)")
            e("L_nopar:")
    prev = [mfs(14, 1, *GR[k]) for k in range(4)] if skew else []
    def pv():
        if prev: e(prev.pop(0))
    e("  s_barrier")
    extra = []
    if o.tail == "A":
        rx(15, 0, 0); rw(15, 0, 0)
        if skew: e("  s_waitcnt lgkmcnt(3)")
        pv(); rx(15, 0, 1); rw(15, 0, 1); pv(); rx(15, 1, 0); rx(15, 1, 1); pv()
        e("  s_barrier")
        rw(15, 1, 0); rw(15, 1, 1); pv()
        e("  s_waitcnt lgkmcnt(6)")
        for k in range(4): mf(15, 0, *GR[k])
        e("  s_waitcnt lgkmcnt(2)")
        mf(15, 1, 0, 0)
        e("  s_waitcnt lgkmcnt(0)")
        mf(15, 1, 0, 1); mf(15, 1, 1, 0); mf(15, 1, 1, 1)
        g.stamp()
        e("  s_nop 4")
    else:
        rx(15, 0, 0); rw(15, 0, 0)
        if skew: e("  s_waitcnt lgkmcnt(3)")
        pv(); rw(15, 0, 1); pv(); rx(15, 1, 0); rw(15, 1, 0); pv(); rw(15, 1, 1); pv()
        if o.tb == 0:
            e("  s_barrier")
            rx(15, 0, 1); rx(15, 1, 1)
            w0 = 2
        else:
            w0 = 0
        e(f"  s_waitcnt lgkmcnt({5+w0})")
        mf(15, 0, 0, 0); mf(15, 0, 0, 1)
        if o.tb == 1:
            e("  s_barrier")
            rx(15, 0, 1); rx(15, 1, 1)
            w0 = 2
        e(f"  s_waitcnt lgkmcnt({2+w0})")
        mf(15, 1, 0, 0)
        e(f"  s_waitcnt lgkmcnt({w0})")
        mf(15, 1, 0, 1)
        if o.tb == 2:
            e("  s_barrier")
            rx(15, 0, 1); rx(15, 1, 1)
        g.stamp()
        e(f"  s_nop {3 if o.tb == 2 else 6}")
        extra = ["  s_waitcnt lgkmcnt(0)", mfs(15, 0, 1, 0), mfs(15, 0, 1, 1), mfs(15, 1, 1, 0), mfs(15, 1, 1, 1)]
    U, E, O = 48, 64, 40
    pol = o.stpol.replace('_', ' ')
    def par(p): return "v[6:7]" if (p >> 1) & 1 else "v[4:5]"
    def st1(p): return [f"  v_pk_fma_f32 v[{U+2*p}:{U+2*p+1}], v[{ACC+2*p}:{ACC+2*p+1}], {par(p)}, {par(p)} op_sel:[0,0,1] op_sel_hi:[1,0,1]"]
    def st2(p): return [f"  v_exp_f32 v{E+2*p}, v{U+2*p}", f"  v_exp_f32 v{E+2*p+1}, v{U+2*p+1}"]
    def st3(p): return [f"  v_pk_fma_f32 v[{E+2*p}:{E+2*p+1}], v[{E+2*p}:{E+2*p+1}], s[46:47], s[46:47]"]
    def st4(p): return [f"  v_rcp_f32 v{E+2*p}, v{E+2*p}", f"  v_rcp_f32 v{E+2*p+1}, v{E+2*p+1}"]
    def st5(p): return [f"  v_pk_mul_f32 v[{U+2*p}:{U+2*p+1}], v[{U+2*p}:{U+2*p+1}], v[{E+2*p}:{E+2*p+1}]"]
    def st6(p): return [f"  v_cvt_pk_bf16_f32 v{O+p}, v{U+2*p}, v{U+2*p+1}"]
    def st7(p):
        off = -4096 + 4096 * (p % 2)
        return [f"  global_store_short v{17+p//2}, v{O+p}, s[16:17] offset:{off} {pol}",
                f"  global_store_short_d16_hi v{17+p//2}, v{O+p}, s[16:17] offset:{off+2048} {pol}"]
    pend = []
    for bi, R in enumerate([(0, 2), (1, 3), (4, 6), (5, 7)]):
        body = [s for st in (st1, st2, st3, st4, st5, st6) for p in R for s in st(p)]
        if bi == 0 and extra:
            k = o.xpos
            body[k:k] = extra[:2]
            for s in extra[2:]:
                k += 3
                body.insert(k, s); k -= 1
        if pend and not o.noswap: body.insert(2, pend.pop(0))
        pos = [int(x) for x in o.spos.split("_")]
        for k, s in enumerate(body):
            e(s)
            for q in pos:
                if q == k and pend: e(pend.pop(0))
        assert not pend
        pend = ([] if o.noswap else [f"  v_permlane16_swap_b32 v{O+R[0]}, v{O+R[1]}"]) + st7(R[0]) + st7(R[1])
    if not o.noswap: e("  s_nop 1")
    for s in pend: e(s)
    g.stamp()
    if o.stamps:
        e("  s_waitcnt vmcnt(0)")
        g.stamp()
        g.stamp(real=True)
        g.dump(g.sn)
    if o.span:
        e("  s_waitcnt vmcnt(0)")
        e("  s_memrealtime s[92:93]")
        e("  s_load_dwordx2 s[54:55], s[0:1], 64")
        e("  s_sleep 40")
        e("  s_waitcnt lgkmcnt(0)")
        e("  s_lshl2_add_u32 s44, s2, s40")
        e("  s_lshl_b32 s44, s44, 3")
        e("  v_mov_b32 v1, s44")
        e("  v_mov_b32 v2, s90")
        e("  v_mov_b32 v3, s92")
        e("  s_mov_b64 exec, 1")
        e("  global_store_dwordx2 v1, v[2:3], s[54:55]")
    if o.xprobe:
        import probe
        probe.emit(e, o.xprobe)
    e("L_end:")
    e("  s_endpgm")
    e('.section .rodata,"a"')
    e(".p2align 6")
    e(f".amdhsa_kernel {NAME}")
    e("  .amdhsa_next_free_vgpr 128")
    e("  .amdhsa_next_free_sgpr 102")
    e("  .amdhsa_accum_offset 128")
    e("  .amdhsa_group_segment_fixed_size 0")
    e("  .amdhsa_kernarg_size 72")
    e("  .amdhsa_user_sgpr_count 2")
    e("  .amdhsa_user_sgpr_kernarg_segment_ptr 1")
    e("  .amdhsa_system_sgpr_workgroup_id_x 1")
    e("  .amdhsa_float_denorm_mode_32 3")
    e(".end_amdhsa_kernel")
    return "\n".join(g.L) + "\n"

def parse(argv):
    ap = argparse.ArgumentParser()
    ap.add_argument("-o", default="-")
    ap.add_argument("--sig", default="012456789ac3defb")
    ap.add_argument("--pos", default="11123278628861")
    ap.add_argument("--ts", default="")
    ap.add_argument("--ktab", type=int, default=0)
    ap.add_argument("--stamps", type=int, default=0)
    ap.add_argument("--stpol", default="sc1")
    ap.add_argument("--ahead", type=int, default=8)
    ap.add_argument("--skew", type=int, default=1)
    ap.add_argument("--tail", default="A")
    ap.add_argument("--tb", type=int, default=0)
    ap.add_argument("--xpos", type=int, default=6)
    ap.add_argument("--noswap", type=int, default=0)
    ap.add_argument("--spos", default="2_5_9_12")
    ap.add_argument("--span", type=int, default=0)
    ap.add_argument("--xprobe", default="")
    return ap.parse_args(argv)

if __name__ == "__main__":
    o = parse(sys.argv[1:])
    s = gen(o)
    if o.o == "-": sys.stdout.write(s)
    else: open(o.o, "w").write(s)
```

```python
import sys, argparse
from gen2 import HEADER, NAME, move_nibbles
from gen3 import G, PARAM

def gen(o):
    g = G(o); e = g.e
    PAR = 131072
    lds = PAR + 512
    e(HEADER.rstrip())
    e(f"; @launch grid=(256,1,1) block=(320,1,1) lds={lds}")
    e('.amdgcn_target "amdgcn-amd-amdhsa--gfx950"')
    e(".text")
    e(".p2align 12")
    e(".fill 832, 4, 0xbf800000")
    e(f".globl {NAME}"); e(".p2align 8"); e(f".type {NAME},@function"); e(f"{NAME}:")
    g.stamp()
    e("  s_load_dwordx16 s[4:19], s[0:1], 0")
    g.stamp(real=True)
    if o.xprobe or o.span: e("  s_memrealtime s[90:91]")
    e("  v_lshrrev_b32 v2, 6, v0")
    e("  s_cmpk_ge_u32 s2, 256")
    e("  s_cbranch_scc1 L_exit")
    e("  v_readfirstlane_b32 s38, v2")
    if o.stamps: e("  s_load_dwordx2 s[54:55], s[0:1], 64")
    e("  s_bfe_u32 s28, s2, 0x20006")
    e("  s_bfe_u32 s29, s2, 0x30003")
    e("  s_bfe_u32 s32, s2, 0x20001")
    e("  s_and_b32 s33, s2, 1")
    e("  s_lshl2_add_u32 s34, s32, s28")
    e("  s_lshl3_add_u32 s35, s33, s29")
    e("  s_lshl_b32 s37, s35, 7")
    e("  s_cmp_eq_u32 s38, 0")
    e("  s_cbranch_scc1 L_loader")
    e("  s_cmp_lg_u32 s38, 1")
    e("  s_cbranch_scc1 L_cons")
    e("  v_and_b32 v9, 63, v0")
    e("  v_lshl_add_u32 v9, v9, 1, s37")
    e("  s_waitcnt lgkmcnt(0)")
    for i in range(4): e(f"  global_load_ushort v{36+i}, v9, s[{8+2*i}:{9+2*i}]")
    e("  s_branch L_cons")
    e("L_exit:")
    e("  s_endpgm")
    e("L_loader:")
    e("  s_cmp_gt_u32 s29, 3")
    e("  s_subb_u32 s45, s29, 0")
    e("  s_lshl1_add_u32 s45, s45, s33")
    e("  s_add_u32 s45, s45, s32")
    e("  s_mul_i32 s41, s28, 7")
    e("  s_add_u32 s41, s41, 1")
    e("  s_lshr_b32 s41, s41, 1")
    e("  s_add_u32 s45, s45, s41")
    e("  s_cmp_ge_u32 s45, 14")
    e("  s_cselect_b32 s41, 12, -2")
    e("  s_sub_u32 s45, s45, s41")
    e("  s_cmp_eq_u32 s29, 3")
    e("  s_cselect_b32 s45, 1, s45")
    e("  s_lshl_b32 s45, s45, 2")
    if o.ktab:
        e("  s_lshl2_add_u32 s41, s45, 128")
        e("  s_load_dwordx4 s[84:87], s[0:1], s41")
    e("  v_lshrrev_b32 v3, 3, v0")
    e("  v_lshlrev_b32 v3, 11, v3")
    e("  v_and_b32 v5, 7, v0")
    e("  v_lshrrev_b32 v6, 4, v0")
    e("  v_xor_b32 v7, v5, v6")
    e("  s_lshl_b32 s36, s34, 17")
    e("  v_lshl_add_u32 v10, v7, 4, v3")
    e("  v_add_u32 v10, s36, v10")
    e("  v_xor_b32 v11, 64, v10")
    e("  v_add_u32 v11, 15360, v11")
    e("  v_add_u32 v12, 30720, v10")
    e("  v_add_u32 v13, 30720, v11")
    for q in range(4): e(f"  v_add_u32 v{14+q}, 65536, v{10+q}")
    e("  v_lshlrev_b32 v6, 2, v6")
    e("  v_and_b32 v6, 4, v6")
    e("  v_xor_b32 v7, v5, v6")
    e("  s_bitset1_b32 s37, 21")
    e("  v_lshl_add_u32 v18, v7, 4, v3")
    e("  v_add_u32 v18, s37, v18")
    e(f"  v_xor_b32 v19, {16 if o.dw == 2 else 32}, v18")
    e("  v_add_u32 v19, 15360, v19")
    e("  v_add_u32 v20, 30720, v18")
    e("  v_add_u32 v21, 30720, v19")
    for q in range(4): e(f"  v_add_u32 v{22+q}, 65536, v{18+q}")
    e("  s_mov_b32 s22, 0x200000")
    e("  s_mov_b32 s23, 0x20000")
    e("  s_mov_b32 s26, 0x400000")
    e("  s_mov_b32 s27, 0x20000")
    sig = [int(x, 16) for x in o.sig]
    pos = [0, 1] + [int(x, 16) for x in o.pos]
    tst = [0, 0] + [max(1, int(x, 16)) for x in (o.ts or o.pos)]
    dyn0 = 0 in pos[1:] or o.ktab
    assert sorted(sig) == list(range(16)) and sig[0] == 0 and len(pos) == 16 and len(tst) == 16
    assert all(0 <= pos[c] <= c for c in range(1, 16)) and all(1 <= tst[c] <= 14 for c in range(2, 16))
    nib = lambda v: sum(x << (4 * k) for k, x in enumerate(v))
    def const64(em, r, v):
        em(f"  s_mov_b32 s{r}, {hex(v & 0xffffffff)}")
        em(f"  s_mov_b32 s{r+1}, {hex(v >> 32)}")
    late = []; l = late.append
    if not o.ktab:
        const64(e, 30, nib(sig))
        const64(e, 46, nib(pos))
        e("  s_lshr_b64 s[48:49], s[30:31], s45")
        e("  s_and_b32 s44, s48, 15")
        e("  s_lshr_b64 s[46:47], s[46:47], s45")
        e("  s_and_b32 s3, s46, 15")
        e("  s_cmp_eq_u32 s3, 1")
        e(f"  s_cselect_b32 s40, s44, {sig[1]}")
        if dyn0:
            e("  s_cmp_eq_u32 s3, 0")
            e("  s_cselect_b32 s42, s44, 0")
            e("  s_cselect_b32 s40, 0, s40")
            e("  s_lshl_b32 s43, s42, 17")
            e("  s_lshl_b32 s42, s42, 7")
        l("  s_lshl_b32 s3, s3, 2")
        move_nibbles(l, "s45", "s3", 1)
        const64(l, 46, nib(tst))
        l("  s_lshr_b64 s[46:47], s[46:47], s45")
        l("  s_and_b32 s39, s46, 15")
    else:
        tst = list(range(1, 15)) * 2
        l("  s_mov_b64 s[30:31], s[84:85]")
        l("  s_mov_b32 s39, s86")
        l("  s_mov_b32 s44, s87")
    l("  s_and_b32 s45, s28, 1")
    l("  s_lshl1_add_u32 s44, s44, s45")
    l("  s_lshl_b32 s44, s44, 16")
    l("  s_lshl_b32 s45, s33, 10")
    l("  s_add_u32 s44, s44, s45")
    l("  s_add_u32 s44, s44, 0x200180")
    l("  v_lshrrev_b32 v33, 1, v0")
    l("  v_lshlrev_b32 v33, 11, v33")
    l("  v_and_b32 v34, 1, v0")
    l("  v_lshl_add_u32 v33, v34, 6, v33")
    def regs(n):
        if n == 0 and not dyn0: return "0", "0"
        return ("s42", "s43") if n % 2 == 0 else ("s40", "s41")
    def decode(n):
        r = "s30" if n < 8 else "s31"
        a, b = regs(n)
        d = [f"  s_bfe_u32 {a}, {r}, {0x40000 + 4*(n%8)}", f"  s_lshl_b32 {b}, {a}, 17", f"  s_lshl_b32 {a}, {a}, 7"]
        if n == 1: d[0] = "  s_bfe_u32 s40, s84, 0x40004" if o.ktab else "  s_nop 0"
        return d
    e("  s_mov_b32 m0, 0")
    e("  s_waitcnt lgkmcnt(0)")
    if o.ktab:
        e("  s_and_b32 s42, s84, 15")
        e("  s_lshl_b32 s43, s42, 17")
        e("  s_lshl_b32 s42, s42, 7")
    e("  s_mov_b64 s[20:21], s[4:5]")
    g.stamp()
    AH = o.ahead
    def ordof(n):
        if n == 15: return [0, 2, 3, 1] if o.tail == "B" else [int(x) for x in o.lastord]
        if n == 0: return [0, 1, 2, 3] if o.order[0] != "0" else [int(x) for x in o.order]
        return [int(x) for x in o.order]
    cur_m0 = 0
    for n in range(16):
        a, b = regs(n)
        order = ordof(n)
        nxt = decode(n + 1) if n < 15 and n != 1 else ["  s_nop 0"] * 3
        for gi, grp in enumerate(order):
            for q in range(4):
                if 4 * gi + q == AH and n >= 3:
                    e(f"  s_waitcnt vmcnt({32+AH})")
                    e("  s_barrier")
                    g.stamp()
                if grp < 2: e(f"  buffer_load_dwordx4 v{10+4*grp+q}, s[20:23], {a} offen offset:{1024*q} lds")
                else: e(f"  buffer_load_dwordx4 v{10+4*grp+q}, s[24:27], {b} offen offset:{1024*q} lds")
                if n == 0 and gi == 0 and q == 0: e("  s_mov_b64 s[24:25], s[6:7]")
            if n == 15 and gi == 3: break
            tgt = (n % 8) * 16384 + 4096 * order[gi + 1] if gi < 3 else ((n + 1) % 8) * 16384 + 4096 * ordof(n + 1)[0]
            if n == 7 and gi == 3: e(f"  s_movk_i32 m0, {tgt}")
            else: e(f"  s_addk_i32 m0, {(tgt - cur_m0) & 0xffff}")
            cur_m0 = tgt
            if gi < 3: e(nxt[gi])
        if n == 1:
            for s in late: e(s)
            for s in decode(2): e(s)
        if n in tst[2:]:
            e(f"  s_cmp_lg_u32 s39, {n}")
            e(f"  s_cbranch_scc1 L_nt{n}")
            e(f"  buffer_load_dword v34, v33, s[24:27], s44 offen")
            e(f"L_nt{n}:")
        elif n < 15:
            e("  s_nop 0")
    for n in (32, 16, 4, 0):
        e(f"  s_waitcnt vmcnt({n})")
        e("  s_barrier")
        g.stamp()
    if o.stamps: g.dump(g.sn)
    e("  s_endpgm")
    g.sn = 2
    e(".p2align 12")
    e("L_cons:")
    e("  s_sub_u32 s40, s38, 1")
    e("  s_lshr_b32 s41, s40, 1")
    e("  s_and_b32 s42, s40, 1")
    e("  v_and_b32 v8, 31, v0")
    e("  v_bfe_u32 v16, v0, 5, 1")
    e("  s_lshl_b32 s44, s42, 11")
    e("  v_bfe_u32 v15, v0, 1, 3")
    e("  v_bfe_u32 v13, v0, 4, 2")
    e("  v_xor_b32 v15, v15, v13")
    e("  v_lshlrev_b32 v15, 4, v15")
    e("  v_and_b32 v12, 15, v0")
    e("  v_lshl_add_u32 v14, v12, 7, v15")
    e("  v_add_u32 v24, s44, v14")
    e("  v_xor_b32 v25, 64, v24")
    e("  v_bfe_u32 v15, v0, 2, 2")
    e("  v_lshlrev_b32 v14, 7, v15")
    e("  v_lshl_add_u32 v14, v13, 10, v14")
    e("  v_lshrrev_b32 v15, 1, v15")
    e("  v_xor_b32 v15, s41, v15")
    e("  v_lshl_add_u32 v14, v15, 6, v14")
    e("  v_bfe_u32 v15, v0, 4, 1")
    if o.dw == 2:
        e("  v_and_b32 v11, 3, v0")
        e("  v_xor_b32 v15, v15, v11")
        e("  v_lshl_add_u32 v14, v15, 4, v14")
        e("  v_and_b32 v15, 1, v0")
    else:
        e("  v_lshl_add_u32 v14, v15, 5, v14")
        e("  v_and_b32 v15, 3, v0")
    e("  v_lshl_add_u32 v14, v15, 3, v14")
    e("  v_add_u32 v26, 8192, v14")
    e(f"  v_xor_b32 v27, {8 if o.dw == 2 else 32}, v26")
    for i in range(4):
        e(f"  v_add_u32 v{28+i}, 65536, v{24+i}")
    e("  s_lshl2_add_u32 s44, s34, s42")
    e("  s_lshl_b32 s44, s44, 15")
    e("  s_lshl1_add_u32 s45, s35, s41")
    e("  s_lshl_b32 s45, s45, 6")
    e("  s_add_u32 s44, s44, s45")
    e("  s_add_u32 s44, s44, 4096")
    if o.dw:
        e("  v_lshlrev_b32 v17, 13, v13")
        if o.dw == 2:
            e("  v_and_b32 v10, 12, v0")
            e("  v_lshl_add_u32 v17, v10, 2, v17")
            e("  v_and_b32 v18, 2, v0")
            e("  v_lshl_add_u32 v17, v18, 1, v17")
            e("  v_and_b32 v18, 1, v0")
            e("  v_bfe_u32 v9, v0, 2, 1")
            e("  v_xor_b32 v20, v18, v9")
            e("  v_lshl_add_u32 v17, v20, 3, v17")
            e("  v_lshl_add_u32 v12, v10, 1, v11")
            e("  v_lshl_add_u32 v12, v9, 2, v12")
        else:
            e("  v_and_b32 v18, 14, v0")
            e("  v_lshl_add_u32 v17, v18, 1, v17")
            e("  v_and_b32 v18, 1, v0")
            e("  v_lshl_add_u32 v17, v18, 5, v17")
        e("  v_add_u32 v17, s44, v17")
        e("  v_add_u32 v19, 65536, v17")
        e("  v_mov_b32 v22, 0x05040100")
        e("  v_mov_b32 v23, 0x03020706")
        e("  v_cmp_ne_u32 vcc, 0, v18")
        e("  s_nop 1")
        e("  v_cndmask_b32 v18, v22, v23, vcc")
    elif o.noswap:
        e("  v_lshlrev_b32 v17, 13, v13")
        e("  v_lshl_add_u32 v17, v12, 1, v17")
        e("  v_add_u32 v17, s44, v17")
        e("  v_add_u32 v18, 32, v17")
        e("  v_add_u32 v19, 65536, v17")
        e("  v_add_u32 v20, 65568, v17")
    else:
        e("  v_lshlrev_b32 v17, 14, v16")
        e("  v_lshl_add_u32 v17, v8, 1, v17")
        e("  v_add_u32 v17, s44, v17")
        e("  v_add_u32 v18, 8192, v17")
        e("  v_add_u32 v19, 65536, v17")
        e("  v_add_u32 v20, 73728, v17")
    e("  s_lshl_b32 s44, s41, 8")
    e(f"  s_add_u32 s44, s44, {PAR}")
    e("  v_lshl_add_u32 v21, v12, 3, s44")
    if o.dw == 2: e("  v_xor_b32 v20, 32, v21")
    e("  s_mov_b32 s46, 0xbfb8aa3b")
    e("  s_mov_b32 s47, 0xbfb8aa3b")
    e("  s_waitcnt lgkmcnt(0)")
    ACC = 112
    FR = [48, 80]
    def slot(c):
        s = c % 8
        return (s // 4) * 4, (s % 4) * 16384, FR[c & 1]
    def rx(c, ks, mt):
        b, off, f = slot(c); d = f + 4 * (2 * ks + mt)
        e(f"  ds_read_b128 v[{d}:{d+3}], v{24+b+ks} offset:{off+4096*mt}")
    def rw(c, ks, t):
        b, off, f = slot(c)
        for h in range(2):
            d = f + 16 + 4 * (2 * ks + t) + 2 * h
            e(f"  ds_read_b64_tr_b16 v[{d}:{d+1}], v{26+b+t} offset:{off+4096*ks+512*h}")
    def mfs(c, ks, mt, t):
        f = FR[c & 1]; d = ACC + 8 * mt + 4 * t
        src = "0" if (c == 0 and ks == 0) else f"v[{d}:{d+3}]"
        x = f + 4 * (2 * ks + mt); w = f + 16 + 4 * (2 * ks + t)
        return f"  v_mfma_f32_16x16x32_bf16 v[{d}:{d+3}], v[{x}:{x+3}], v[{w}:{w+3}], {src}"
    def mf(c, ks, mt, t): e(mfs(c, ks, mt, t))
    GR = ((0, 0), (0, 1), (1, 1), (1, 0))
    skew = o.skew
    for c in range(15):
        e("  s_barrier")
        if c == 2 and o.dw == 2:
            e("  ds_read_b64 v[4:5], v21")
            e("  ds_read_b64 v[6:7], v20")
        elif c == 2: e("  ds_read2_b64 v[4:7], v21 offset0:0 offset1:16")
        for k in range(4):
            rx(c, k >> 1, k & 1); rw(c, k >> 1, k & 1)
            if skew and c >= 1:
                if k == 0: e("  s_waitcnt lgkmcnt(3)")
                mf(c - 1, 1, *GR[k])
        e("  s_waitcnt lgkmcnt(6)")
        for k in range(4): mf(c, 0, *GR[k])
        if not skew:
            e("  s_waitcnt lgkmcnt(0)")
            for k in range(4): mf(c, 1, *GR[k])
        if c == 0:
            e("  s_cmp_lg_u32 s38, 1")
            e("  s_cbranch_scc1 L_nopar")
            e("  s_waitcnt vmcnt(0)")
            for s in PARAM:
                for a, b_ in ((26, 36), (27, 37), (28, 38), (29, 39), (30, 40), (31, 41)): s = s.replace(f"v{a}", f"v{b_}")
                e(s)
            e("  v_and_b32 v9, 63, v0")
            e("  v_lshlrev_b32 v9, 3, v9")
            e(f"  v_add_u32 v9, {PAR}, v9")
            e("  ds_write_b64 v9, v[40:41]")
            e("  s_waitcnt lgkmcnt(0)")
            e("L_nopar:")
    prev = [mfs(14, 1, *GR[k]) for k in range(4)] if skew else []
    def pv():
        if prev: e(prev.pop(0))
    e("  s_barrier")
    extra = []
    if o.tail == "A":
        rx(15, 0, 0); rw(15, 0, 0)
        if skew: e("  s_waitcnt lgkmcnt(3)")
        pv(); rx(15, 0, 1); rw(15, 0, 1); pv(); rx(15, 1, 0); rx(15, 1, 1); pv()
        e("  s_barrier")
        rw(15, 1, 0); rw(15, 1, 1); pv()
        e("  s_waitcnt lgkmcnt(6)")
        if o.mt0 == 0:
            for k in range(4): mf(15, 0, *GR[k])
            e("  s_waitcnt lgkmcnt(2)")
            mf(15, 1, 0, 0)
            e("  s_waitcnt lgkmcnt(0)")
            mf(15, 1, 0, 1); mf(15, 1, 1, 0); mf(15, 1, 1, 1)
            g.stamp()
            e("  s_nop 4")
        else:
            mf(15, 0, 0, 0); mf(15, 0, 0, 1)
            if o.mt0 == 2: mf(15, 0, 1, 1)
            e("  s_waitcnt lgkmcnt(2)")
            mf(15, 1, 0, 0)
            e("  s_waitcnt lgkmcnt(0)")
            mf(15, 1, 0, 1)
            if o.mt0 == 1: mf(15, 0, 1, 1)
            mf(15, 0, 1, 0); mf(15, 1, 1, 1); mf(15, 1, 1, 0)
            g.stamp()
            e(f"  s_nop {1 + o.mt0}")
    else:
        rx(15, 0, 0); rw(15, 0, 0)
        if skew: e("  s_waitcnt lgkmcnt(3)")
        pv(); rw(15, 0, 1); pv(); rx(15, 1, 0); rw(15, 1, 0); pv(); rw(15, 1, 1); pv()
        if o.tb == 0:
            e("  s_barrier")
            rx(15, 0, 1); rx(15, 1, 1)
            w0 = 2
        else:
            w0 = 0
        e(f"  s_waitcnt lgkmcnt({5+w0})")
        mf(15, 0, 0, 0); mf(15, 0, 0, 1)
        if o.tb == 1:
            e("  s_barrier")
            rx(15, 0, 1); rx(15, 1, 1)
            w0 = 2
        e(f"  s_waitcnt lgkmcnt({2+w0})")
        mf(15, 1, 0, 0)
        e(f"  s_waitcnt lgkmcnt({w0})")
        mf(15, 1, 0, 1)
        if o.tb == 2:
            e("  s_barrier")
            rx(15, 0, 1); rx(15, 1, 1)
        g.stamp()
        e(f"  s_nop {3 if o.tb == 2 else 6}")
        extra = ["  s_waitcnt lgkmcnt(0)", mfs(15, 0, 1, 0), mfs(15, 0, 1, 1), mfs(15, 1, 1, 0), mfs(15, 1, 1, 1)]
    U, E, O = 48, 64, 40
    pol = o.stpol.replace('_', ' ')
    def par(p): return "v[6:7]" if (p >> 1) & 1 else "v[4:5]"
    def st1(p): return [f"  v_pk_fma_f32 v[{U+2*p}:{U+2*p+1}], v[{ACC+2*p}:{ACC+2*p+1}], {par(p)}, {par(p)} op_sel:[0,0,1] op_sel_hi:[1,0,1]"]
    def st2(p): return [f"  v_exp_f32 v{E+2*p}, v{U+2*p}", f"  v_exp_f32 v{E+2*p+1}, v{U+2*p+1}"]
    def st3(p): return [f"  v_pk_fma_f32 v[{E+2*p}:{E+2*p+1}], v[{E+2*p}:{E+2*p+1}], s[46:47], s[46:47]"]
    def st4(p): return [f"  v_rcp_f32 v{E+2*p}, v{E+2*p}", f"  v_rcp_f32 v{E+2*p+1}, v{E+2*p+1}"]
    def st5(p): return [f"  v_pk_mul_f32 v[{U+2*p}:{U+2*p+1}], v[{U+2*p}:{U+2*p+1}], v[{E+2*p}:{E+2*p+1}]"]
    def st6(p): return [f"  v_cvt_pk_bf16_f32 v{O+p}, v{U+2*p}, v{U+2*p+1}"]
    def st7(p):
        off = -4096 + 4096 * (p % 2)
        return [f"  global_store_short v{17+p//2}, v{O+p}, s[16:17] offset:{off} {pol}",
                f"  global_store_short_d16_hi v{17+p//2}, v{O+p}, s[16:17] offset:{off+2048} {pol}"]
    if o.dw:
        pend = []
        for bi, R in enumerate([(0, 2), (1, 3), (4, 6), (5, 7)]):
            body = [s for st in (st1, st2, st3, st4, st5) for p in R for s in st(p)]
            P0 = O + 2 * bi
            body += [f"  v_cvt_pk_bf16_f32 v{P0+h}, v{U+2*R[0]+h}, v{U+2*R[1]+h}" for h in range(2)]
            body[2:2] = pend[:4]; pend = pend[4:]
            pos = [int(x) for x in o.dpos.split("_")]
            for k, s in enumerate(body):
                e(s)
                for q in pos:
                    if q == k and pend: e(pend.pop(0))
            assert not pend
            pend = [f"  v_mov_b32_dpp v{22+h}, v{P0+h} quad_perm:[1,0,3,2] row_mask:0xf bank_mask:0xf" for h in range(2)]
            pend += [f"  v_perm_b32 v{P0+h}, v{22+h}, v{P0+h}, v18" for h in range(2)]
            pend += [f"  global_store_dword v{17+2*(bi>>1)}, v{P0+h}, s[16:17] offset:{-4096+4096*(bi&1)+2048*h} {pol}" for h in range(2)]
        e("  s_nop 0")
        for s in pend: e(s)
    else:
        pend = []
        for bi, R in enumerate([(0, 2), (1, 3), (4, 6), (5, 7)]):
            body = [s for st in (st1, st2, st3, st4, st5, st6) for p in R for s in st(p)]
            if bi == 0 and extra:
                k = o.xpos
                body[k:k] = extra[:2]
                for s in extra[2:]:
                    k += 3
                    body.insert(k, s); k -= 1
            if pend and not o.noswap: body.insert(2, pend.pop(0))
            pos = [int(x) for x in o.spos.split("_")]
            for k, s in enumerate(body):
                e(s)
                for q in pos:
                    if q == k and pend: e(pend.pop(0))
            assert not pend
            pend = ([] if o.noswap else [f"  v_permlane16_swap_b32 v{O+R[0]}, v{O+R[1]}"]) + st7(R[0]) + st7(R[1])
        if not o.noswap: e("  s_nop 1")
        for s in pend: e(s)
    g.stamp()
    if o.stamps:
        e("  s_waitcnt vmcnt(0)")
        g.stamp()
        g.stamp(real=True)
        g.dump(g.sn)
    if o.span:
        e("  s_waitcnt vmcnt(0)")
        e("  s_memrealtime s[92:93]")
        e("  s_load_dwordx2 s[54:55], s[0:1], 64")
        e("  s_sleep 40")
        e("  s_waitcnt lgkmcnt(0)")
        e("  s_lshl2_add_u32 s44, s2, s40")
        e("  s_lshl_b32 s44, s44, 3")
        e("  v_mov_b32 v1, s44")
        e("  v_mov_b32 v2, s90")
        e("  v_mov_b32 v3, s92")
        e("  s_mov_b64 exec, 1")
        e("  global_store_dwordx2 v1, v[2:3], s[54:55]")
    if o.xprobe:
        import probe
        probe.emit(e, o.xprobe)
    e("L_end:")
    e("  s_endpgm")
    e('.section .rodata,"a"')
    e(".p2align 6")
    e(f".amdhsa_kernel {NAME}")
    e("  .amdhsa_next_free_vgpr 128")
    e("  .amdhsa_next_free_sgpr 102")
    e("  .amdhsa_accum_offset 128")
    e("  .amdhsa_group_segment_fixed_size 0")
    e("  .amdhsa_kernarg_size 72")
    e("  .amdhsa_user_sgpr_count 2")
    e("  .amdhsa_user_sgpr_kernarg_segment_ptr 1")
    e("  .amdhsa_system_sgpr_workgroup_id_x 1")
    e("  .amdhsa_float_denorm_mode_32 3")
    e(".end_amdhsa_kernel")
    return "\n".join(g.L) + "\n"

def parse(argv):
    ap = argparse.ArgumentParser()
    ap.add_argument("-o", default="-")
    ap.add_argument("--sig", default="012456789ac3defb")
    ap.add_argument("--pos", default="11123278628861")
    ap.add_argument("--ts", default="")
    ap.add_argument("--ktab", type=int, default=0)
    ap.add_argument("--dw", type=int, default=2)
    ap.add_argument("--dpos", default="7_13")
    ap.add_argument("--order", default="2031")
    ap.add_argument("--lastord", default="2013")
    ap.add_argument("--mt0", type=int, default=1)
    ap.add_argument("--stamps", type=int, default=0)
    ap.add_argument("--stpol", default="sc1")
    ap.add_argument("--ahead", type=int, default=8)
    ap.add_argument("--skew", type=int, default=1)
    ap.add_argument("--tail", default="A")
    ap.add_argument("--tb", type=int, default=0)
    ap.add_argument("--xpos", type=int, default=6)
    ap.add_argument("--noswap", type=int, default=0)
    ap.add_argument("--spos", default="2_5_9_12")
    ap.add_argument("--span", type=int, default=0)
    ap.add_argument("--xprobe", default="")
    return ap.parse_args(argv)

if __name__ == "__main__":
    o = parse(sys.argv[1:])
    s = gen(o)
    if o.o == "-": sys.stdout.write(s)
    else: open(o.o, "w").write(s)
```

```python
import sys
SPAN = "--span" in sys.argv and sys.argv[sys.argv.index("--span") + 1] == "1"
OUT = sys.argv[sys.argv.index("-o") + 1]

NAME = "standalone__batchnorm__sampling_kernel"
SIG = [int(x, 16) for x in "012456789ac3defb"]
POS = [0, 1] + [int(x, 16) for x in "11123278628861"]
AHEAD = 8
PAR = 131072
L = []
def e(s, c=None):
    L.append(f"  {s:<72}; {c}" if c else f"  {s}")
def raw(s): L.append(s)
def nib(v): return sum(x << (4 * k) for k, x in enumerate(v))
def const64(r, v, c):
    e(f"s_mov_b32 s{r}, {hex(v & 0xffffffff)}", c)
    e(f"s_mov_b32 s{r+1}, {hex(v >> 32)}")

raw("""; Kernarg layout for this problem (72 bytes, ptrs only, base s[0:1]):
;   offset  64: d_ws      268435456 bytes workspace (unused)""")
raw(f"; @launch grid=(256,1,1) block=(320,1,1) lds={PAR + 512}")
raw(""";
; Workgroups with equal id % 8 cover a 256x512 output block (L2 locality; speed only).
; pulled out of HBM by one workgroup a few steps before the others read it.""")
raw('.amdgcn_target "amdgcn-amd-amdhsa--gfx950"')
raw(".text")
raw(f".globl {NAME}")
raw(".p2align 8")
raw(f".type {NAME},@function")
raw(f"{NAME}:")
e("s_load_dwordx16 s[4:19], s[0:1], 0", "x, w, mean, var, g, b, out, debug")
if SPAN: e("s_memrealtime s[90:91]")
e("v_lshrrev_b32 v2, 6, v0")
e("s_cmpk_ge_u32 s2, 256", "workgroups past the 16x16 tiles exit")
e("s_cbranch_scc1 L_exit")
e("v_readfirstlane_b32 s38, v2", "wave id")
e("s_lshr_b32 s28, s2, 6", "i : tile row inside the block")
e("s_bfe_u32 s29, s2, 0x30003", "j : tile column inside the block")
e("s_bfe_u32 s32, s2, 0x20001", "xm: block row")
e("s_and_b32 s33, s2, 1", "xn: block column")
e("s_lshl2_add_u32 s34, s32, s28", "tm = 4 xm + i")
e("s_lshl3_add_u32 s35, s33, s29", "tn = 8 xn + j")
e("s_lshl_b32 s37, s35, 7", "byte offset of the tile's 64 columns")
e("s_cmp_eq_u32 s38, 0")
e("s_cbranch_scc1 L_loader")
e("s_cmp_lg_u32 s38, 1")
e("s_cbranch_scc1 L_cons")
e("v_and_b32 v9, 63, v0", "wave 1: one BN column per lane")
e("v_lshl_add_u32 v9, v9, 1, s37")
e("s_waitcnt lgkmcnt(0)")
for i, n in enumerate(("mean", "var", "g", "b")):
    e(f"global_load_ushort v{36+i}, v9, s[{8+2*i}:{9+2*i}]", n)
e("s_branch L_cons")
raw("L_exit:")
e("s_endpgm")

raw("")
raw("L_loader:")
e("s_cmp_gt_u32 s29, 3")
e("s_subb_u32 s45, s29, 0")
e("s_lshl1_add_u32 s45, s45, s33")
e("s_add_u32 s45, s45, s32")
e("s_mul_i32 s41, s28, 7")
e("s_add_u32 s41, s41, 1")
e("s_lshr_b32 s41, s41, 1")
e("s_add_u32 s45, s45, s41")
e("s_cmp_ge_u32 s45, 14")
e("s_cselect_b32 s41, 12, -2")
e("s_sub_u32 s45, s45, s41")
e("s_cmp_eq_u32 s29, 3")
e("s_cselect_b32 s45, 1, s45")
e("s_lshl_b32 s45, s45, 2", "4 c")
e("v_lshrrev_b32 v3, 3, v0")
e("v_lshlrev_b32 v3, 11, v3")
e("v_and_b32 v5, 7, v0")
e("v_lshrrev_b32 v6, 4, v0")
e("v_xor_b32 v7, v5, v6", "x swizzle = (row >> 1) & 7")
e("s_lshl_b32 s36, s34, 17")
e("v_lshl_add_u32 v10, v7, 4, v3")
e("v_add_u32 v10, s36, v10")
e("v_xor_b32 v11, 64, v10")
e("s_movk_i32 s50, 15360", "8 rows - 1 KiB")
e("s_movk_i32 s51, 30720")
e("s_lshl_b32 s52, 1, 16", "32 rows")
e("v_add_u32 v11, s50, v11")
e("v_add_u32 v12, s51, v10")
e("v_add_u32 v13, s51, v11")
for q in range(4): e(f"v_add_u32 v{14+q}, s52, v{10+q}")
e("v_lshlrev_b32 v6, 2, v6")
e("v_and_b32 v6, 4, v6")
e("v_xor_b32 v7, v5, v6", "w swizzle = 4 bit1(k) + bit3(k)")
e("s_bitset1_b32 s37, 21", "+2 MiB: w[1]")
e("v_lshl_add_u32 v18, v7, 4, v3")
e("v_add_u32 v18, s37, v18")
e("v_xor_b32 v19, 16, v18")
e("v_add_u32 v19, s50, v19")
e("v_add_u32 v20, s51, v18")
e("v_add_u32 v21, s51, v19")
for q in range(4): e(f"v_add_u32 v{22+q}, s52, v{18+q}")
e("s_lshl_b32 s22, 1, 21", "SRD x: s[20:23], 2 MiB")
e("s_mov_b32 s23, 0x20000")
e("s_lshl_b32 s26, 1, 22", "SRD w: s[24:27], w[0] and w[1]")
e("s_mov_b32 s27, 0x20000")
const64(30, nib(SIG), "common chunk order, one nibble per step")
const64(46, nib(POS), "step of the early chunk, one nibble per class")
e("s_lshr_b64 s[48:49], s[30:31], s45")
e("s_and_b32 s44, s48, 15", "early chunk")
e("s_lshr_b64 s[46:47], s[46:47], s45")
e("s_and_b32 s3, s46, 15", "its step")
e("s_cmp_eq_u32 s3, 1")
e(f"s_cselect_b32 s40, s44, {SIG[1]}", "chunk of step 1")
e("s_mov_b32 m0, 0")
e("s_waitcnt lgkmcnt(0)")
e("s_mov_b64 s[20:21], s[4:5]")

def regs(n):
    if n == 0: return "0", "0"
    return ("s42", "s43") if n % 2 == 0 else ("s40", "s41")
def decode(n):
    a, b = regs(n)
    d = [f"s_and_b32 {a}, s30, 15", f"s_lshl_b32 {b}, {a}, 17", f"s_lshl_b32 {a}, {a}, 7"]
    if n == 1: d[0] = "s_lshl_b32 s39, s3, 2"
    return d
def order(n):
    return [0, 1, 2, 3] if n == 0 else [2, 0, 1, 3] if n == 15 else [2, 0, 3, 1]
def late():
    raw("; finish moving nibble c of s[30:31] down to the early step (started between the loads above)")
    e("s_add_u32 s52, s52, 4")
    e("s_bfm_b64 s[50:51], s52, s39")
    e("s_andn2_b64 s[30:31], s[30:31], s[50:51]")
    e("s_or_b64 s[30:31], s[30:31], s[46:47]")
    e("s_and_b64 s[48:49], s[48:49], 15")
    e("s_lshl_b64 s[48:49], s[48:49], s39")
    e("s_or_b64 s[30:31], s[30:31], s[48:49]")
    e("s_lshr_b64 s[30:31], s[30:31], 8", "low nibble = chunk of step 2")
    e("s_cmp_eq_u32 s29, 3")
    e("s_cselect_b32 s39, 0, s3", "prefetch step (0: none)")
    e("s_and_b32 s45, s28, 1")
    e("s_lshl1_add_u32 s44, s44, s45")
    e("s_lshl_b32 s44, s44, 6")
    e("s_add_u32 s44, s44, s33")
    e("s_lshl_b32 s44, s44, 10")
    e("s_add_u32 s44, s44, 0x200180")
    e("v_and_b32 v33, 62, v0")
    e("v_lshlrev_b32 v33, 10, v33")
cur = 0
for n in range(16):
    raw(f"; step {n} -> LDS slot {n % 8}")
    a, b = regs(n)
    od = order(n)
    nxt = decode(n + 1) if n < 15 else ["s_nop 0"] * 3
    if n == 1: nxt = ["s_bfm_b64 s[46:47], s52, s39", "s_and_b64 s[46:47], s[46:47], s[30:31]", "s_lshl_b64 s[46:47], s[46:47], 4"]
    for gi, grp in enumerate(od):
        for q in range(4):
            if 4 * gi + q == AHEAD and n >= 3:
                e(f"s_waitcnt vmcnt({32+AHEAD})", f"step {n-3} has landed")
                e("s_barrier")
            e(f"buffer_load_dwordx4 v{10+4*grp+q}, {'s[20:23]' if grp < 2 else 's[24:27]'}, {a if grp < 2 else b} offen offset:{1024*q} lds")
            if n == 0 and gi == 0 and q == 0: e("s_mov_b64 s[24:25], s[6:7]")
        if n == 15 and gi == 3: break
        tgt = (n % 8) * 16384 + 4096 * od[gi + 1] if gi < 3 else ((n + 1) % 8) * 16384 + 4096 * order(n + 1)[0]
        if n == 7 and gi == 3: e(f"s_movk_i32 m0, {tgt}")
        else: e(f"s_addk_i32 m0, {hex((tgt - cur) & 0xffff)}")
        cur = tgt
        if gi < 3: e(nxt[gi])
    if n == 1:
        late()
        for s in decode(2): e(s)
    if 1 <= n <= 13: e("s_lshr_b64 s[30:31], s[30:31], 4")
    if n in POS[2:]:
        e(f"s_cmp_lg_u32 s39, {n}")
        e(f"s_cbranch_scc1 L_nt{n}")
        e("buffer_load_dword v34, v33, s[24:27], s44 offen", "L2 prefetch for tile column 3")
        raw(f"L_nt{n}:")
    elif n == 0:
        e("s_sub_u32 s52, s45, s39")
    elif n == 14:
        e("s_nop 0")
for n, c in ((32, "step 13"), (16, "step 14"), (4, "step 15 except w rows 32-63"), (0, "everything")):
    e(f"s_waitcnt vmcnt({n})", c)
    e("s_barrier")
e("s_endpgm")

raw("")
raw(".p2align 12")
raw("L_cons:")
e("s_sub_u32 s40, s38, 1")
e("s_lshr_b32 s41, s40, 1", "nh")
e("s_and_b32 s42, s40, 1", "mh")
e("s_lshl_b32 s44, s42, 11")
e("v_bfe_u32 v15, v0, 1, 3")
e("v_bfe_u32 v13, v0, 4, 2", "G = lane >> 4")
e("v_xor_b32 v15, v15, v13")
e("v_lshlrev_b32 v15, 4, v15")
e("v_and_b32 v12, 15, v0")
e("v_lshl_add_u32 v14, v12, 7, v15")
e("v_add_u32 v24, s44, v14", "x fragment address, k 0-31")
e("v_xor_b32 v25, 64, v24", "x fragment address, k 32-63")
e("v_bfe_u32 v15, v0, 2, 2")
e("v_lshlrev_b32 v14, 7, v15")
e("v_lshl_add_u32 v14, v13, 10, v14")
e("v_lshrrev_b32 v15, 1, v15")
e("v_xor_b32 v15, s41, v15")
e("v_lshl_add_u32 v14, v15, 6, v14")
e("v_bfe_u32 v15, v0, 4, 1")
e("v_and_b32 v11, 3, v0")
e("v_xor_b32 v15, v15, v11")
e("v_lshl_add_u32 v14, v15, 4, v14")
e("v_and_b32 v15, 1, v0")
e("v_lshl_add_u32 v14, v15, 3, v14")
e("v_add_u32 v26, 8192, v14", "w transpose-read address, tile 0")
e("v_xor_b32 v27, 8, v26", "w transpose-read address, tile 1")
for i in range(4): e(f"v_add_u32 v{28+i}, 65536, v{24+i}", "same for slots 4-7" if i == 0 else None)
e("s_lshl2_add_u32 s44, s34, s42")
e("s_lshl_b32 s44, s44, 15")
e("s_lshl1_add_u32 s45, s35, s41")
e("s_lshl_b32 s45, s45, 6")
e("s_add_u32 s44, s44, s45")
e("s_add_u32 s44, s44, 4096")
e("v_lshlrev_b32 v17, 13, v13")
e("v_and_b32 v10, 12, v0")
e("v_lshl_add_u32 v17, v10, 2, v17")
e("v_and_b32 v18, 2, v0")
e("v_lshl_add_u32 v17, v18, 1, v17")
e("v_and_b32 v18, 1, v0")
e("v_bfe_u32 v9, v0, 2, 1")
e("v_xor_b32 v20, v18, v9")
e("v_lshl_add_u32 v17, v20, 3, v17")
e("v_lshl_add_u32 v12, v10, 1, v11")
e("v_lshl_add_u32 v12, v9, 2, v12", "column of tile 0")
e("v_add_u32 v17, s44, v17", "store offset of row 4 G + 2, mt = 0")
e("v_add_u32 v19, 65536, v17", "mt = 1")
e("v_mov_b32 v22, 0x05040100")
e("v_mov_b32 v23, 0x03020706")
e("v_cmp_ne_u32 vcc, 0, v18")
e("s_lshl_b32 s44, s41, 8")
e(f"s_add_u32 s44, s44, {PAR}")
e("v_cndmask_b32 v18, v22, v23, vcc", "byte selector of the lane-pair exchange")
e("v_lshl_add_u32 v21, v12, 3, s44", "parameter address, tile 0")
e("v_xor_b32 v20, 32, v21", "parameter address, tile 1")
e("s_mov_b32 s46, 0xbfb8aa3b", "-log2(e)")
e("s_mov_b32 s47, 0xbfb8aa3b")
e("s_waitcnt lgkmcnt(0)")
e("s_cmp_lg_u32 s38, 1")
e("s_cbranch_scc1 L_nopar")
e("v_and_b32 v9, 63, v0")
e("v_lshlrev_b32 v9, 3, v9")
e(f"v_add_u32 v9, {PAR}, v9")
e("s_waitcnt vmcnt(0)")
for s in ("v_lshlrev_b32 v37, 16, v37", "v_add_f32 v37, 0x3727c5ac, v37", "v_cvt_pk_bf16_f32 v37, v37, v37", "v_lshlrev_b32 v37, 16, v37",
          "v_sqrt_f32 v37, v37", "v_lshlrev_b32 v36, 16, v36", "v_cvt_pk_bf16_f32 v37, v37, v37", "v_lshlrev_b32 v37, 16, v37",
          "v_rcp_f32 v37, v37", "v_lshlrev_b32 v38, 16, v38", "v_cvt_pk_bf16_f32 v37, v37, v37", "v_lshlrev_b32 v37, 16, v37",
          "v_mul_f32 v37, v37, v38", "v_cvt_pk_bf16_f32 v37, v37, v37", "v_lshlrev_b32 v37, 16, v37", "v_lshlrev_b32 v39, 16, v39",
          "v_fma_f32 v39, -v36, v37, v39", "v_mul_f32 v40, 0xbfb8aa3b, v37", "v_mul_f32 v41, 0xbfb8aa3b, v39"):
    e(s)
e("ds_write_b64 v9, v[40:41]", "drained by step 0's lgkmcnt, read after the next barrier")
raw("L_nopar:")

ACC, FR = 112, [48, 80]
def slot(c): return (c % 8 // 4) * 4, (c % 4) * 16384, FR[c & 1]
def rx(c, ks, mt):
    b, off, f = slot(c); d = f + 4 * (2 * ks + mt)
    e(f"ds_read_b128 v[{d}:{d+3}], v{24+b+ks} offset:{off+4096*mt}")
def rw(c, ks, t):
    b, off, f = slot(c)
    for h in range(2):
        d = f + 16 + 4 * (2 * ks + t) + 2 * h
        e(f"ds_read_b64_tr_b16 v[{d}:{d+1}], v{26+b+t} offset:{off+4096*ks+512*h}")
def mf(c, ks, mt, t):
    f = FR[c & 1]; d = ACC + 8 * mt + 4 * t
    x = f + 4 * (2 * ks + mt); w = f + 16 + 4 * (2 * ks + t)
    e(f"v_mfma_f32_16x16x32_bf16 v[{d}:{d+3}], v[{x}:{x+3}], v[{w}:{w+3}], " + ("0" if c == 0 and ks == 0 else f"v[{d}:{d+3}]"))
GR = ((0, 0), (0, 1), (1, 1), (1, 0))
for c in range(15):
    raw(f"; step {c}: fragment reads" + (f", second half of step {c-1}" if c else "") + ", first half of this step")
    e("s_barrier")
    for k in range(4):
        rx(c, k >> 1, k & 1); rw(c, k >> 1, k & 1)
        if c >= 1:
            if k == 0: e("s_waitcnt lgkmcnt(3)")
            mf(c - 1, 1, *GR[k])
    e("s_waitcnt lgkmcnt(6)")
    for k in range(4): mf(c, 0, *GR[k])
    if c == 1:
        e("ds_read_b64 v[4:5], v21", "scale, shift of tile 0")
        e("ds_read_b64 v[6:7], v20", "scale, shift of tile 1")
raw("; step 15")
e("s_barrier")
rx(15, 0, 0); rw(15, 0, 0)
e("s_waitcnt lgkmcnt(3)")
mf(14, 1, *GR[0]); rx(15, 0, 1); rw(15, 0, 1); mf(14, 1, *GR[1]); rx(15, 1, 0); rx(15, 1, 1); mf(14, 1, *GR[2])
e("s_barrier")
rw(15, 1, 0); rw(15, 1, 1); mf(14, 1, *GR[3])
e("s_waitcnt lgkmcnt(6)")
mf(15, 0, 0, 0); mf(15, 0, 0, 1)
e("s_waitcnt lgkmcnt(2)")
mf(15, 1, 0, 0)
e("s_waitcnt lgkmcnt(0)")
mf(15, 1, 0, 1); mf(15, 0, 1, 1); mf(15, 0, 1, 0); mf(15, 1, 1, 1); mf(15, 1, 1, 0)
e("s_nop 2", "MFMA result -> VALU distance")
U, E, O = 48, 64, 40
pend = []
for bi, R in enumerate([(0, 2), (1, 3), (4, 6), (5, 7)]):
    par = lambda p: "v[6:7]" if (p >> 1) & 1 else "v[4:5]"
    body = [f"v_pk_fma_f32 v[{U+2*p}:{U+2*p+1}], v[{ACC+2*p}:{ACC+2*p+1}], {par(p)}, {par(p)} op_sel:[0,0,1] op_sel_hi:[1,0,1]" for p in R]
    body += [f"v_exp_f32 v{E+2*p+h}, v{U+2*p+h}" for p in R for h in range(2)]
    body += [f"v_pk_fma_f32 v[{E+2*p}:{E+2*p+1}], v[{E+2*p}:{E+2*p+1}], s[46:47], s[46:47]" for p in R]
    body += [f"v_rcp_f32 v{E+2*p+h}, v{E+2*p+h}" for p in R for h in range(2)]
    body += [f"v_pk_mul_f32 v[{U+2*p}:{U+2*p+1}], v[{U+2*p}:{U+2*p+1}], v[{E+2*p}:{E+2*p+1}]" for p in R]
    P0 = O + 2 * bi
    body += [f"v_cvt_pk_bf16_f32 v{P0+h}, v{U+2*R[0]+h}, v{U+2*R[1]+h}" for h in range(2)]
    body[2:2] = pend[:4]; pend = pend[4:]
    for k, s in enumerate(body):
        e(s)
        if k in (7, 13) and pend: e(pend.pop(0))
    pend = [f"v_mov_b32_dpp v{22+h}, v{P0+h} quad_perm:[1,0,3,2] row_mask:0xf bank_mask:0xf" for h in range(2)]
    pend += [f"v_perm_b32 v{P0+h}, v{22+h}, v{P0+h}, v18" for h in range(2)]
    pend += [f"global_store_dword v{17+2*(bi>>1)}, v{P0+h}, s[16:17] offset:{-4096+4096*(bi&1)+2048*h} sc1" for h in range(2)]
e("s_nop 0", "VALU write -> DPP read distance")
for s in pend: e(s)
if SPAN:
    for s in ("s_waitcnt vmcnt(0)", "s_memrealtime s[92:93]", "s_load_dwordx2 s[54:55], s[0:1], 64", "s_sleep 40", "s_waitcnt lgkmcnt(0)",
              "s_lshl2_add_u32 s44, s2, s40", "s_lshl_b32 s44, s44, 3", "v_mov_b32 v1, s44", "v_mov_b32 v2, s90", "v_mov_b32 v3, s92",
              "s_mov_b64 exec, 1", "global_store_dwordx2 v1, v[2:3], s[54:55]"): e(s)
e("s_endpgm")
raw(f""".section .rodata,"a"
.p2align 6
.amdhsa_kernel {NAME}
  .amdhsa_next_free_vgpr 128
  .amdhsa_next_free_sgpr {102 if SPAN else 54}
  .amdhsa_accum_offset 128
  .amdhsa_group_segment_fixed_size 0
  .amdhsa_kernarg_size 72
  .amdhsa_user_sgpr_count 2
  .amdhsa_user_sgpr_kernarg_segment_ptr 1
  .amdhsa_system_sgpr_workgroup_id_x 1
  .amdhsa_float_denorm_mode_32 3
.end_amdhsa_kernel""")
open(OUT, "w").write("\n".join(L) + "\n")
```

```python
import sys, argparse
from gen2 import HEADER, NAME, move_nibbles
from gen3 import G, PARAM

def gen(o):
    g = G(o); e = g.e
    PAR = 131072
    lds = PAR + 512 + o.ldsx
    e(HEADER.rstrip())
    e(f"; @launch grid=(256,1,1) block=({320 + 256 * (o.x_dup > 0)},1,1) lds={lds}")
    e('.amdgcn_target "amdgcn-amd-amdhsa--gfx950"')
    e(".text")
    e(".p2align 12")
    e(".fill 832, 4, 0xbf800000")
    e(f".globl {NAME}"); e(".p2align 8"); e(f".type {NAME},@function"); e(f"{NAME}:")
    if o.x_late:
        e("  s_and_b32 s3, s2, 7")
        e("  s_cbranch_scc1 L_notlate")
        e(f"  s_sleep {o.x_late}")
        e("L_notlate:")
    g.stamp()
    e("  s_load_dwordx16 s[4:19], s[0:1], 0")
    g.stamp(real=True)
    if o.xprobe or o.span: e("  s_memrealtime s[90:91]")
    e("  v_lshrrev_b32 v2, 6, v0")
    e("  s_cmpk_ge_u32 s2, 256")
    e("  s_cbranch_scc1 L_exit")
    e("  v_readfirstlane_b32 s38, v2")
    if o.stamps: e("  s_load_dwordx2 s[54:55], s[0:1], 64")
    e("  s_bfe_u32 s28, s2, 0x20006")
    e("  s_bfe_u32 s29, s2, 0x30003")
    e("  s_bfe_u32 s32, s2, 0x20001")
    e("  s_and_b32 s33, s2, 1")
    e("  s_lshl2_add_u32 s34, s32, s28")
    e("  s_lshl3_add_u32 s35, s33, s29")
    e("  s_lshl_b32 s37, s35, 7")
    e("  s_cmp_eq_u32 s38, 0")
    e("  s_cbranch_scc1 L_loader")
    e("  s_cmp_lg_u32 s38, 1")
    e("  s_cbranch_scc1 L_cons")
    e("  v_and_b32 v9, 63, v0")
    e("  v_lshl_add_u32 v9, v9, 1, s37")
    e("  s_waitcnt lgkmcnt(0)")
    for i in range(4): e(f"  global_load_ushort v{36+i}, v9, s[{8+2*i}:{9+2*i}]")
    e("  s_branch L_cons")
    e("L_exit:")
    e("  s_endpgm")
    e("L_loader:")
    for _ in range(o.lshift): e("  s_nop 0")
    e("  s_cmp_gt_u32 s29, 3")
    e("  s_subb_u32 s45, s29, 0")
    e("  s_lshl1_add_u32 s45, s45, s33")
    e("  s_add_u32 s45, s45, s32")
    e("  s_mul_i32 s41, s28, 7")
    e("  s_add_u32 s41, s41, 1")
    e("  s_lshr_b32 s41, s41, 1")
    e("  s_add_u32 s45, s45, s41")
    e("  s_cmp_ge_u32 s45, 14")
    e("  s_cselect_b32 s41, 12, -2")
    e("  s_sub_u32 s45, s45, s41")
    e("  s_cmp_eq_u32 s29, 3")
    e("  s_cselect_b32 s45, 1, s45")
    e("  s_lshl_b32 s45, s45, 2")
    if o.ktab:
        e("  s_lshl2_add_u32 s41, s45, 128")
        e("  s_load_dwordx4 s[84:87], s[0:1], s41")
    e("  v_lshrrev_b32 v3, 3, v0")
    e("  v_lshlrev_b32 v3, 11, v3")
    e("  v_and_b32 v5, 7, v0")
    e("  v_lshrrev_b32 v6, 4, v0")
    e("  v_xor_b32 v7, v5, v6")
    e("  s_lshl_b32 s36, s34, 17")
    e("  v_lshl_add_u32 v10, v7, 4, v3")
    e("  v_add_u32 v10, s36, v10")
    e("  v_xor_b32 v11, 64, v10")
    e("  v_add_u32 v11, 15360, v11")
    e("  v_add_u32 v12, 30720, v10")
    e("  v_add_u32 v13, 30720, v11")
    for q in range(4): e(f"  v_add_u32 v{14+q}, 65536, v{10+q}")
    e("  v_lshlrev_b32 v6, 2, v6")
    e("  v_and_b32 v6, 4, v6")
    e("  v_xor_b32 v7, v5, v6")
    e("  s_bitset1_b32 s37, 21")
    e("  v_lshl_add_u32 v18, v7, 4, v3")
    e("  v_add_u32 v18, s37, v18")
    e(f"  v_xor_b32 v19, {16 if o.dw == 2 else 32}, v18")
    e("  v_add_u32 v19, 15360, v19")
    e("  v_add_u32 v20, 30720, v18")
    e("  v_add_u32 v21, 30720, v19")
    for q in range(4): e(f"  v_add_u32 v{22+q}, 65536, v{18+q}")
    e("  s_mov_b32 s22, 0x200000")
    e("  s_mov_b32 s23, 0x20000")
    e("  s_mov_b32 s26, 0x400000")
    e("  s_mov_b32 s27, 0x20000")
    sig = [int(x, 16) for x in o.sig]
    pos = [0, 1] + [int(x, 16) for x in o.pos]
    tst = [0, 0] + [max(1, int(x, 16)) for x in (o.ts or o.pos)]
    dyn0 = 0 in pos[1:] or o.ktab
    assert sorted(sig) == list(range(16)) and sig[0] == 0 and len(pos) == 16 and len(tst) == 16
    assert all(0 <= pos[c] <= c for c in range(1, 16)) and all(1 <= tst[c] <= 14 for c in range(2, 16))
    nib = lambda v: sum(x << (4 * k) for k, x in enumerate(v))
    def const64(em, r, v):
        em(f"  s_mov_b32 s{r}, {hex(v & 0xffffffff)}")
        em(f"  s_mov_b32 s{r+1}, {hex(v >> 32)}")
    late = []; l = late.append
    if not o.ktab:
        const64(e, 30, nib(sig))
        const64(e, 46, nib(pos))
        e("  s_lshr_b64 s[48:49], s[30:31], s45")
        e("  s_and_b32 s44, s48, 15")
        e("  s_lshr_b64 s[46:47], s[46:47], s45")
        e("  s_and_b32 s3, s46, 15")
        e("  s_cmp_eq_u32 s3, 1")
        e(f"  s_cselect_b32 s40, s44, {sig[1]}")
        if dyn0:
            e("  s_cmp_eq_u32 s3, 0")
            e("  s_cselect_b32 s42, s44, 0")
            e("  s_cselect_b32 s40, 0, s40")
            e("  s_lshl_b32 s43, s42, 17")
            e("  s_lshl_b32 s42, s42, 7")
        l("  s_lshl_b32 s3, s3, 2")
        move_nibbles(l, "s45", "s3", 1)
        const64(l, 46, nib(tst))
        l("  s_lshr_b64 s[46:47], s[46:47], s45")
        l("  s_and_b32 s39, s46, 15")
    else:
        tst = list(range(1, 15)) * 2
        l("  s_mov_b64 s[30:31], s[84:85]")
        l("  s_mov_b32 s39, s86")
        l("  s_mov_b32 s44, s87")
    l("  s_and_b32 s45, s28, 1")
    l("  s_lshl1_add_u32 s44, s44, s45")
    l("  s_lshl_b32 s44, s44, 16")
    l("  s_lshl_b32 s45, s33, 10")
    l("  s_add_u32 s44, s44, s45")
    l("  s_add_u32 s44, s44, 0x200180")
    l("  v_lshrrev_b32 v33, 1, v0")
    l("  v_lshlrev_b32 v33, 11, v33")
    l("  v_and_b32 v34, 1, v0")
    l("  v_lshl_add_u32 v33, v34, 6, v33")
    def regs(n):
        if n == 0 and not dyn0: return "0", "0"
        return ("s42", "s43") if n % 2 == 0 else ("s40", "s41")
    def decode(n):
        r = "s30" if n < 8 else "s31"
        a, b = regs(n)
        d = [f"  s_bfe_u32 {a}, {r}, {0x40000 + 4*(n%8)}", f"  s_lshl_b32 {b}, {a}, 17", f"  s_lshl_b32 {a}, {a}, 7"]
        if n == 1: d[0] = "  s_bfe_u32 s40, s84, 0x40004" if o.ktab else "  s_nop 0"
        return d
    e("  s_mov_b32 m0, 0")
    e("  s_waitcnt lgkmcnt(0)")
    if o.ktab:
        e("  s_and_b32 s42, s84, 15")
        e("  s_lshl_b32 s43, s42, 17")
        e("  s_lshl_b32 s42, s42, 7")
    e("  s_mov_b64 s[20:21], s[4:5]")
    g.stamp()
    AH = o.ahead
    def ordof(n):
        if n == 15: return [0, 2, 3, 1] if o.tail == "B" else [int(x) for x in o.lastord]
        if n == 0: return [0, 1, 2, 3] if o.order[0] != "0" else [int(x) for x in o.order]
        return [int(x) for x in o.order]
    cur_m0 = 0
    for n in range(16):
        a, b = regs(n)
        order = ordof(n)
        nxt = decode(n + 1) if n < 15 and n != 1 else ["  s_nop 0"] * 3
        for gi, grp in enumerate(order):
            for q in range(4):
                if 4 * gi + q == AH and n >= 3:
                    e(f"  s_waitcnt vmcnt({32+AH})")
                    e("  s_barrier")
                    g.stamp()
                if grp < 2: e(f"  buffer_load_dwordx4 v{10+4*grp+q}, s[20:23], {a} offen offset:{1024*q} lds")
                else: e(f"  buffer_load_dwordx4 v{10+4*grp+q}, s[24:27], {b} offen offset:{1024*q} lds")
                if n == 0 and gi == 0 and q == 0: e("  s_mov_b64 s[24:25], s[6:7]")
            if n == 15 and gi == 3: break
            tgt = (n % 8) * 16384 + 4096 * order[gi + 1] if gi < 3 else ((n + 1) % 8) * 16384 + 4096 * ordof(n + 1)[0]
            if n == 7 and gi == 3: e(f"  s_movk_i32 m0, {tgt}")
            else: e(f"  s_addk_i32 m0, {(tgt - cur_m0) & 0xffff}")
            cur_m0 = tgt
            if gi < 3: e(nxt[gi])
        if n == 1:
            for s in late: e(s)
            for s in decode(2): e(s)
        if n in tst[2:]:
            e(f"  s_cmp_lg_u32 s39, {n}")
            if o.tsel:
                e("  s_cselect_b32 s45, s26, s44")
                e(f"  buffer_load_dword v34, v33, s[24:27], s45 offen")
            else:
                e(f"  s_cbranch_scc1 L_nt{n}")
                e(f"  buffer_load_dword v34, v33, s[24:27], s44 offen")
                e(f"L_nt{n}:")
        elif n < 15:
            e("  s_nop 0")
    for n in (32, 16, 4, 0):
        e(f"  s_waitcnt vmcnt({n})")
        e("  s_barrier")
        g.stamp()
    if o.stamps: g.dump(g.sn)
    e("  s_endpgm")
    g.sn = 2
    e(".p2align 12")
    e("L_cons:")
    for _ in range(o.cshift): e("  s_nop 0")
    e("  s_sub_u32 s40, s38, 1")
    e("  s_lshr_b32 s41, s40, 1")
    e("  s_and_b32 s42, s40, 1")
    e("  v_and_b32 v8, 31, v0")
    e("  v_bfe_u32 v16, v0, 5, 1")
    e("  s_lshl_b32 s44, s42, 11")
    e("  v_bfe_u32 v15, v0, 1, 3")
    e("  v_bfe_u32 v13, v0, 4, 2")
    e("  v_xor_b32 v15, v15, v13")
    e("  v_lshlrev_b32 v15, 4, v15")
    e("  v_and_b32 v12, 15, v0")
    e("  v_lshl_add_u32 v14, v12, 7, v15")
    e("  v_add_u32 v24, s44, v14")
    e("  v_xor_b32 v25, 64, v24")
    e("  v_bfe_u32 v15, v0, 2, 2")
    e("  v_lshlrev_b32 v14, 7, v15")
    e("  v_lshl_add_u32 v14, v13, 10, v14")
    e("  v_lshrrev_b32 v15, 1, v15")
    e("  v_xor_b32 v15, s41, v15")
    e("  v_lshl_add_u32 v14, v15, 6, v14")
    e("  v_bfe_u32 v15, v0, 4, 1")
    if o.dw == 2:
        e("  v_and_b32 v11, 3, v0")
        e("  v_xor_b32 v15, v15, v11")
        e("  v_lshl_add_u32 v14, v15, 4, v14")
        e("  v_and_b32 v15, 1, v0")
    else:
        e("  v_lshl_add_u32 v14, v15, 5, v14")
        e("  v_and_b32 v15, 3, v0")
    e("  v_lshl_add_u32 v14, v15, 3, v14")
    e("  v_add_u32 v26, 8192, v14")
    e(f"  v_xor_b32 v27, {8 if o.dw == 2 else 32}, v26")
    for i in range(4):
        e(f"  v_add_u32 v{28+i}, 65536, v{24+i}")
    e("  s_lshl2_add_u32 s44, s34, s42")
    e("  s_lshl_b32 s44, s44, 15")
    e("  s_lshl1_add_u32 s45, s35, s41")
    e("  s_lshl_b32 s45, s45, 6")
    e("  s_add_u32 s44, s44, s45")
    e("  s_add_u32 s44, s44, 4096")
    if o.dw:
        e("  v_lshlrev_b32 v17, 13, v13")
        if o.dw == 2:
            e("  v_and_b32 v10, 12, v0")
            e("  v_lshl_add_u32 v17, v10, 2, v17")
            e("  v_and_b32 v18, 2, v0")
            e("  v_lshl_add_u32 v17, v18, 1, v17")
            e("  v_and_b32 v18, 1, v0")
            e("  v_bfe_u32 v9, v0, 2, 1")
            e("  v_xor_b32 v20, v18, v9")
            e("  v_lshl_add_u32 v17, v20, 3, v17")
            e("  v_lshl_add_u32 v12, v10, 1, v11")
            e("  v_lshl_add_u32 v12, v9, 2, v12")
        else:
            e("  v_and_b32 v18, 14, v0")
            e("  v_lshl_add_u32 v17, v18, 1, v17")
            e("  v_and_b32 v18, 1, v0")
            e("  v_lshl_add_u32 v17, v18, 5, v17")
        e("  v_add_u32 v17, s44, v17")
        e("  v_add_u32 v19, 65536, v17")
        e("  v_mov_b32 v22, 0x05040100")
        e("  v_mov_b32 v23, 0x03020706")
        e("  v_cmp_ne_u32 vcc, 0, v18")
        e("  s_nop 1")
        e("  v_cndmask_b32 v18, v22, v23, vcc")
    elif o.noswap:
        e("  v_lshlrev_b32 v17, 13, v13")
        e("  v_lshl_add_u32 v17, v12, 1, v17")
        e("  v_add_u32 v17, s44, v17")
        e("  v_add_u32 v18, 32, v17")
        e("  v_add_u32 v19, 65536, v17")
        e("  v_add_u32 v20, 65568, v17")
    else:
        e("  v_lshlrev_b32 v17, 14, v16")
        e("  v_lshl_add_u32 v17, v8, 1, v17")
        e("  v_add_u32 v17, s44, v17")
        e("  v_add_u32 v18, 8192, v17")
        e("  v_add_u32 v19, 65536, v17")
        e("  v_add_u32 v20, 73728, v17")
    e("  s_lshl_b32 s44, s41, 8")
    e(f"  s_add_u32 s44, s44, {PAR}")
    e("  v_lshl_add_u32 v21, v12, 3, s44")
    if o.dw == 2: e("  v_xor_b32 v20, 32, v21")
    e("  s_mov_b32 s46, 0xbfb8aa3b")
    e("  s_mov_b32 s47, 0xbfb8aa3b")
    e("  s_waitcnt lgkmcnt(0)")
    if o.x_pre:
        for i in range(16):
            e(f"  v_prng_b32 v{48+i}, v{47+i if i else 17}")
        for i in range(16): e(f"  v_and_b32 v{48+i}, 0xbfffbfff, v{48+i}")
        e("  s_mov_b32 s50, 0")
        e("L_pre:")
        for k in range(4):
            e(f"  v_mfma_f32_16x16x32_bf16 v[{112+4*k}:{115+4*k}], v[{48+4*k}:{51+4*k}], v[{48+4*((k+1)%4)}:{51+4*((k+1)%4)}], 0")
            if o.x_gap: e(f"  s_nop {o.x_gap}")
        e("  s_add_u32 s50, s50, 1")
        e(f"  s_cmp_lt_u32 s50, {o.x_pre}")
        e("  s_cbranch_scc1 L_pre")
    if o.x_dup:
        e("  s_cmp_lt_u32 s38, 5")
        e("  s_cbranch_scc1 L_real")
        e("  v_and_b32 v26, 0x3fff, v26")
        e("  v_and_b32 v27, 0x3fff, v27")
        e("  s_mov_b32 s50, 0")
        e("L_dup:")
        e("  s_barrier")
        for k in range(o.x_dup):
            e(f"  ds_read_b64_tr_b16 v[{48+2*k}:{49+2*k}], v{26+(k&1)} offset:{512*(k>>1&1)+4096*(k>>2&1)}")
        e("  v_add_u32 v26, 16384, v26")
        e("  v_add_u32 v27, 16384, v27")
        e("  v_and_b32 v26, 0x1ffff, v26")
        e("  v_and_b32 v27, 0x1ffff, v27")
        e("  s_add_u32 s50, s50, 1")
        e("  s_cmp_lt_u32 s50, 16")
        e("  s_waitcnt lgkmcnt(0)")
        e("  s_cbranch_scc1 L_dup")
        e("  s_endpgm")
        e("L_real:")
    ACC = 112
    FR = [48, 80]
    def slot(c):
        s = c % 8
        return (s // 4) * 4, (s % 4) * 16384, FR[c & 1]
    def rx(c, ks, mt):
        b, off, f = slot(c); d = f + 4 * (2 * ks + mt)
        e(f"  ds_read_b128 v[{d}:{d+3}], v{24+b+ks} offset:{off+4096*mt}")
    def rw(c, ks, t):
        b, off, f = slot(c)
        for h in range(2):
            d = f + 16 + 4 * (2 * ks + t) + 2 * h
            e(f"  ds_read_b64_tr_b16 v[{d}:{d+1}], v{26+b+t} offset:{off+4096*ks+512*h}")
    def mfs(c, ks, mt, t):
        f = FR[c & 1]; d = ACC + 8 * mt + 4 * t
        src = "0" if (c == 0 and ks == 0) else f"v[{d}:{d+3}]"
        x = f + 4 * (2 * ks + mt); w = f + 16 + 4 * (2 * ks + t)
        return f"  v_mfma_f32_16x16x32_bf16 v[{d}:{d+3}], v[{x}:{x+3}], v[{w}:{w+3}], {src}"
    def mf(c, ks, mt, t): e(mfs(c, ks, mt, t))
    GR = ((0, 0), (0, 1), (1, 1), (1, 0))
    skew = o.skew
    pl = []
    for s_ in PARAM:
        for a, b_ in ((26, 36), (27, 37), (28, 38), (29, 39), (30, 40), (31, 41)): s_ = s_.replace(f"v{a}", f"v{b_}")
        pl.append(s_)
    pl = ["  v_and_b32 v9, 63, v0", "  v_lshlrev_b32 v9, 3, v9", f"  v_add_u32 v9, {PAR}, v9", "  s_waitcnt vmcnt(0)"] + pl + ["  ds_write_b64 v9, v[40:41]"]
    if o.pstep != "0": pl.append("  s_waitcnt lgkmcnt(0)")
    psteps = [int(x) - 1 for x in o.pstep]
    cuts = [len(pl) * k // len(psteps) for k in range(len(psteps) + 1)]
    def parblock(c):
        if c not in psteps: return
        k = psteps.index(c)
        e("  s_cmp_lg_u32 s38, 1")
        e(f"  s_cbranch_scc1 L_nopar{k}")
        for s_ in pl[cuts[k]:cuts[k+1]]: e(s_)
        e(f"L_nopar{k}:")
    PR = max(psteps) + 2
    parblock(-1)
    for c in range(15):
        e("  s_barrier")
        for k in range(4):
            rx(c, k >> 1, k & 1); rw(c, k >> 1, k & 1)
            if skew and c >= 1:
                if k == 0: e("  s_waitcnt lgkmcnt(3)")
                mf(c - 1, 1, *GR[k])
        e("  s_waitcnt lgkmcnt(6)")
        for k in range(4): mf(c, 0, *GR[k])
        if c == PR and o.dw == 2:
            e("  ds_read_b64 v[4:5], v21")
            e("  ds_read_b64 v[6:7], v20")
        elif c == PR: e("  ds_read2_b64 v[4:7], v21 offset0:0 offset1:16")
        if not skew:
            e("  s_waitcnt lgkmcnt(0)")
            for k in range(4): mf(c, 1, *GR[k])
        parblock(c)
    prev = [mfs(14, 1, *GR[k]) for k in range(4)] if skew else []
    def pv():
        if prev: e(prev.pop(0))
    e("  s_barrier")
    extra = []
    if o.tail == "A":
        rx(15, 0, 0); rw(15, 0, 0)
        if skew: e("  s_waitcnt lgkmcnt(3)")
        pv(); rx(15, 0, 1); rw(15, 0, 1); pv(); rx(15, 1, 0); rx(15, 1, 1); pv()
        e("  s_barrier")
        rw(15, 1, 0); rw(15, 1, 1); pv()
        e("  s_waitcnt lgkmcnt(6)")
        if o.mt0 == 0:
            for k in range(4): mf(15, 0, *GR[k])
            e("  s_waitcnt lgkmcnt(2)")
            mf(15, 1, 0, 0)
            e("  s_waitcnt lgkmcnt(0)")
            mf(15, 1, 0, 1); mf(15, 1, 1, 0); mf(15, 1, 1, 1)
            g.stamp()
            e("  s_nop 4")
        else:
            mf(15, 0, 0, 0); mf(15, 0, 0, 1)
            if o.mt0 == 2: mf(15, 0, 1, 1)
            e("  s_waitcnt lgkmcnt(2)")
            mf(15, 1, 0, 0)
            e("  s_waitcnt lgkmcnt(0)")
            mf(15, 1, 0, 1)
            if o.mt0 == 1: mf(15, 0, 1, 1)
            mf(15, 0, 1, 0); mf(15, 1, 1, 1); mf(15, 1, 1, 0)
            g.stamp()
            e(f"  s_nop {1 + o.mt0}")
    else:
        rx(15, 0, 0); rw(15, 0, 0)
        if skew: e("  s_waitcnt lgkmcnt(3)")
        pv(); rw(15, 0, 1); pv(); rx(15, 1, 0); rw(15, 1, 0); pv(); rw(15, 1, 1); pv()
        if o.tb == 0:
            e("  s_barrier")
            rx(15, 0, 1); rx(15, 1, 1)
            w0 = 2
        else:
            w0 = 0
        e(f"  s_waitcnt lgkmcnt({5+w0})")
        mf(15, 0, 0, 0); mf(15, 0, 0, 1)
        if o.tb == 1:
            e("  s_barrier")
            rx(15, 0, 1); rx(15, 1, 1)
            w0 = 2
        e(f"  s_waitcnt lgkmcnt({2+w0})")
        mf(15, 1, 0, 0)
        e(f"  s_waitcnt lgkmcnt({w0})")
        mf(15, 1, 0, 1)
        if o.tb == 2:
            e("  s_barrier")
            rx(15, 0, 1); rx(15, 1, 1)
        g.stamp()
        e(f"  s_nop {3 if o.tb == 2 else 6}")
        extra = ["  s_waitcnt lgkmcnt(0)", mfs(15, 0, 1, 0), mfs(15, 0, 1, 1), mfs(15, 1, 1, 0), mfs(15, 1, 1, 1)]
    U, E, O = 48, 64, 40
    pol = o.stpol.replace('_', ' ')
    def par(p): return "v[6:7]" if (p >> 1) & 1 else "v[4:5]"
    def st1(p): return [f"  v_pk_fma_f32 v[{U+2*p}:{U+2*p+1}], v[{ACC+2*p}:{ACC+2*p+1}], {par(p)}, {par(p)} op_sel:[0,0,1] op_sel_hi:[1,0,1]"]
    def st2(p): return [f"  v_exp_f32 v{E+2*p}, v{U+2*p}", f"  v_exp_f32 v{E+2*p+1}, v{U+2*p+1}"]
    def st3(p): return [f"  v_pk_fma_f32 v[{E+2*p}:{E+2*p+1}], v[{E+2*p}:{E+2*p+1}], s[46:47], s[46:47]"]
    def st4(p): return [f"  v_rcp_f32 v{E+2*p}, v{E+2*p}", f"  v_rcp_f32 v{E+2*p+1}, v{E+2*p+1}"]
    def st5(p): return [f"  v_pk_mul_f32 v[{U+2*p}:{U+2*p+1}], v[{U+2*p}:{U+2*p+1}], v[{E+2*p}:{E+2*p+1}]"]
    def st6(p): return [f"  v_cvt_pk_bf16_f32 v{O+p}, v{U+2*p}, v{U+2*p+1}"]
    def st7(p):
        off = -4096 + 4096 * (p % 2)
        return [f"  global_store_short v{17+p//2}, v{O+p}, s[16:17] offset:{off} {pol}",
                f"  global_store_short_d16_hi v{17+p//2}, v{O+p}, s[16:17] offset:{off+2048} {pol}"]
    if o.dw:
        pend = []
        for bi, R in enumerate([(0, 2), (1, 3), (4, 6), (5, 7)]):
            body = [s for st in (st1, st2, st3, st4, st5) for p in R for s in st(p)]
            P0 = O + 2 * bi
            body += [f"  v_cvt_pk_bf16_f32 v{P0+h}, v{U+2*R[0]+h}, v{U+2*R[1]+h}" for h in range(2)]
            body[2:2] = pend[:4]; pend = pend[4:]
            pos = [int(x) for x in o.dpos.split("_")]
            for k, s in enumerate(body):
                e(s)
                for q in pos:
                    if q == k and pend: e(pend.pop(0))
            assert not pend
            pend = [f"  v_mov_b32_dpp v{22+h}, v{P0+h} quad_perm:[1,0,3,2] row_mask:0xf bank_mask:0xf" for h in range(2)]
            pend += [f"  v_perm_b32 v{P0+h}, v{22+h}, v{P0+h}, v18" for h in range(2)]
            pend += [f"  global_store_dword v{17+2*(bi>>1)}, v{P0+h}, s[16:17] offset:{-4096+4096*(bi&1)+2048*h} {pol}" for h in range(2)]
        e("  s_nop 0")
        for s in pend: e(s)
    else:
        pend = []
        for bi, R in enumerate([(0, 2), (1, 3), (4, 6), (5, 7)]):
            body = [s for st in (st1, st2, st3, st4, st5, st6) for p in R for s in st(p)]
            if bi == 0 and extra:
                k = o.xpos
                body[k:k] = extra[:2]
                for s in extra[2:]:
                    k += 3
                    body.insert(k, s); k -= 1
            if pend and not o.noswap: body.insert(2, pend.pop(0))
            pos = [int(x) for x in o.spos.split("_")]
            for k, s in enumerate(body):
                e(s)
                for q in pos:
                    if q == k and pend: e(pend.pop(0))
            assert not pend
            pend = ([] if o.noswap else [f"  v_permlane16_swap_b32 v{O+R[0]}, v{O+R[1]}"]) + st7(R[0]) + st7(R[1])
        if not o.noswap: e("  s_nop 1")
        for s in pend: e(s)
    g.stamp()
    if o.stamps:
        e("  s_waitcnt vmcnt(0)")
        g.stamp()
        g.stamp(real=True)
        g.dump(g.sn)
    if o.span:
        e("  s_waitcnt vmcnt(0)")
        e("  s_memrealtime s[92:93]")
        e("  s_load_dwordx2 s[54:55], s[0:1], 64")
        e("  s_sleep 40")
        e("  s_waitcnt lgkmcnt(0)")
        e("  s_lshl2_add_u32 s44, s2, s40")
        e("  s_lshl_b32 s44, s44, 3")
        e("  v_mov_b32 v1, s44")
        e("  v_mov_b32 v2, s90")
        e("  v_mov_b32 v3, s92")
        e("  s_mov_b64 exec, 1")
        e("  global_store_dwordx2 v1, v[2:3], s[54:55]")
    if o.xprobe:
        import probe
        probe.emit(e, o.xprobe)
    e("L_end:")
    e("  s_endpgm")
    e('.section .rodata,"a"')
    e(".p2align 6")
    e(f".amdhsa_kernel {NAME}")
    e(f"  .amdhsa_next_free_vgpr {o.nv}")
    e(f"  .amdhsa_next_free_sgpr {102 if (o.span or o.stamps or o.xprobe or o.ktab) else o.ns}")
    e(f"  .amdhsa_accum_offset {o.nv}")
    e("  .amdhsa_group_segment_fixed_size 0")
    e("  .amdhsa_kernarg_size 72")
    e("  .amdhsa_user_sgpr_count 2")
    e("  .amdhsa_user_sgpr_kernarg_segment_ptr 1")
    e("  .amdhsa_system_sgpr_workgroup_id_x 1")
    e("  .amdhsa_float_denorm_mode_32 3")
    e(".end_amdhsa_kernel")
    return "\n".join(g.L) + "\n"

def parse(argv):
    ap = argparse.ArgumentParser()
    ap.add_argument("-o", default="-")
    ap.add_argument("--sig", default="012456789ac3defb")
    ap.add_argument("--pos", default="11123278628861")
    ap.add_argument("--ts", default="")
    ap.add_argument("--ktab", type=int, default=0)
    ap.add_argument("--x_late", type=int, default=0)
    ap.add_argument("--cshift", type=int, default=0)
    ap.add_argument("--lshift", type=int, default=0)
    ap.add_argument("--nv", type=int, default=128)
    ap.add_argument("--ns", type=int, default=102)
    ap.add_argument("--ldsx", type=int, default=0)
    ap.add_argument("--x_dup", type=int, default=0)
    ap.add_argument("--pstep", default="0")
    ap.add_argument("--tsel", type=int, default=0)
    ap.add_argument("--x_pre", type=int, default=0)
    ap.add_argument("--x_gap", type=int, default=0)
    ap.add_argument("--dw", type=int, default=2)
    ap.add_argument("--dpos", default="7_13")
    ap.add_argument("--order", default="2031")
    ap.add_argument("--lastord", default="2013")
    ap.add_argument("--mt0", type=int, default=1)
    ap.add_argument("--stamps", type=int, default=0)
    ap.add_argument("--stpol", default="sc1")
    ap.add_argument("--ahead", type=int, default=8)
    ap.add_argument("--skew", type=int, default=1)
    ap.add_argument("--tail", default="A")
    ap.add_argument("--tb", type=int, default=0)
    ap.add_argument("--xpos", type=int, default=6)
    ap.add_argument("--noswap", type=int, default=0)
    ap.add_argument("--spos", default="2_5_9_12")
    ap.add_argument("--span", type=int, default=0)
    ap.add_argument("--xprobe", default="")
    return ap.parse_args(argv)

if __name__ == "__main__":
    o = parse(sys.argv[1:])
    s = gen(o)
    if o.o == "-": sys.stdout.write(s)
    else: open(o.o, "w").write(s)
```
